```python
import torch

def _softmax(x, axis=-1):
    return torch.softmax(x, dim=axis)
def _gelu(x):
    return torch.nn.functional.gelu(x, approximate="tanh")
def _silu(x):
    return torch.nn.functional.silu(x)
def _sigmoid(x):
    return torch.sigmoid(x)
def _layernorm(x, axis=-1, eps=1e-5):
    m = x.mean(dim=axis, keepdim=True)
    v = x.var(dim=axis, keepdim=True, unbiased=False)
    return (x - m) / torch.sqrt(v + eps)
def _scatter_add(tgt, idx, src, axis=0):
    return tgt.clone().index_add_(axis, idx, src)
def _segment_sum(src, seg, n):
    out = torch.zeros((n,) + src.shape[1:], dtype=src.dtype)
    return out.index_add_(0, seg, src)
def _pad(x, pw):
    flat = tuple(v for pair in reversed(pw) for v in pair)
    return torch.nn.functional.pad(x, flat)

kernel_name = 'standalone__softmax_full_bidir__decode'

def setup_inputs():

    _w = (lambda a: (lambda t: t.to(torch.bfloat16) if t.is_floating_point() else t)(torch.as_tensor(a)))
    B, H, Sq, Skv, Dh = 4, 16, 1, 16384, 256
    return {
        "q": _w((lambda *s: torch.randn(*s, dtype=torch.bfloat16) * 0.8)(B, H, Sq, Dh)),
        "k": _w((lambda *s: torch.randn(*s, dtype=torch.bfloat16) * 0.8)(B, H, Skv, Dh)),
        "v": _w((lambda *s: torch.randn(*s, dtype=torch.bfloat16) * 0.05)(B, H, Skv, Dh)),
    }

def reference(q, k, v):
    scale = q.shape[-1] ** -0.5
    scores = torch.einsum('bhqd,bhkd->bhqk', q, k) * scale
    attn = _softmax(scores, axis=-1)
    return torch.einsum('bhqk,bhkd->bhqd', attn, v)
```

```python
import sys

KNAME = "standalone__softmax_full_bidir__decode_kernel"
HEADER_COMMENTS = """; Kernarg layout for this problem (48 bytes, ptrs only, base s[0:1]):
"""

def gen(NW=4, WPH=4, flags="nt", stamps=False):
    G = 64 * WPH
    KEYS_WG = 16384 // WPH
    REGION = KEYS_WG * 512
    TILE = 16 * 512
    STEP = TILE * NW
    NT = KEYS_WG // (16 * NW)
    assert NT % 2 == 0
    C = 0.0625 * 1.4426950408889634
    import struct
    Cbits = struct.unpack("<I", struct.pack("<f", C))[0]

    o = []
    a = o.append
    a(HEADER_COMMENTS.rstrip())
    LDS = NW * 1024 + NW * 16 + NW * 4
    LDS = (LDS + 63) // 64 * 64
    a(f"; @launch grid=({G},1,1) block=({NW*64},1,1) lds={LDS}")
    a('.amdgcn_target "amdgcn-amd-amdhsa--gfx950"')
    a(".text")
    a(f".globl {KNAME}")
    a(".p2align 8")
    a(f".type {KNAME},@function")
    a(f"{KNAME}:")

    vLane = 1; vOff0 = 2; vOff1 = 3
    vQ = 4
    vM = 12; vMs = 13; vL = 14; vR = 15
    vS = 16
    vR01 = 20; vR23 = 21; vX = 22; vPP = 23
    vMask = 24
    vD = 28
    vA = 36
    vT = 52; vU = 53
    vKV = 56
    def KB(p): return vKV + 64 * p
    def VB(p): return vKV + 64 * p + 32
    NV = vKV + 128
    sK = 12; sV = 16
    sOffK = 20; sOffV = 21; sCnt = 22; sC = 23; sWave = 3; sHead = 24

    a(f"    s_cmp_ge_u32 s2, {G}")
    a("    s_cbranch_scc1 L_done")
    if stamps:
        a("    s_memrealtime s[30:31]")
    a("    s_load_dwordx4 s[4:7], s[0:1], 0")
    a("    s_load_dwordx2 s[8:9], s[0:1], 16")
    a(f"    v_lshrrev_b32 v{vT}, 6, v0")
    a(f"    v_and_b32 v{vLane}, 63, v0")
    a(f"    v_readfirstlane_b32 s{sWave}, v{vT}")
    a(f"    v_lshrrev_b32 v{vU}, 4, v{vLane}")
    a(f"    v_and_b32 v{vT}, 15, v{vLane}")
    a(f"    v_lshlrev_b32 v{vOff0}, 9, v{vU}")
    a(f"    v_lshl_add_u32 v{vOff0}, v{vT}, 4, v{vOff0}")
    a(f"    v_add_u32 v{vOff1}, 4096, v{vOff0}")
    a(f"    v_lshlrev_b32 v{vX}, 4, v{vT}")
    a(f"    s_lshr_b32 s{sHead}, s2, {WPH.bit_length()-1}")
    a(f"    s_mul_i32 s26, s2, {REGION}")
    a(f"    s_lshl_b32 s27, s{sHead}, 9")
    a(f"    s_mul_i32 s{sOffK}, s{sWave}, {TILE}")
    a(f"    s_mov_b32 s{sC}, {Cbits:#x}")
    a("    s_waitcnt lgkmcnt(0)")
    a("    s_add_u32 s4, s4, s27")
    a("    s_addc_u32 s5, s5, 0")
    a(f"    global_load_dwordx4 v[{vQ}:{vQ+3}], v{vX}, s[4:5]")
    a(f"    global_load_dwordx4 v[{vQ+4}:{vQ+7}], v{vX}, s[4:5] offset:256")
    a(f"    s_add_u32 s{sK}, s6, s26")
    a(f"    s_addc_u32 s{sK+1}, s7, 0")
    a(f"    s_mov_b32 s{sK+2}, {REGION}")
    a(f"    s_mov_b32 s{sK+3}, 0x20000")
    a(f"    s_add_u32 s{sV}, s8, s26")
    a(f"    s_addc_u32 s{sV+1}, s9, 0")
    a(f"    s_mov_b32 s{sV+2}, {REGION}")
    a(f"    s_mov_b32 s{sV+3}, 0x20000")
    a(f"    s_mov_b32 s{sOffV}, s{sOffK}")

    def loads(base, srd, soff):
        for g in range(4):
            for h in range(2):
                r = base + (g * 2 + h) * 4
                vo = vOff0 if g < 2 else vOff1
                off = (g & 1) * 2048 + h * 256
                offs = f" offset:{off}" if off else ""
                a(f"    buffer_load_dwordx4 v[{r}:{r+3}], v{vo}, s[{srd}:{srd+3}], s{soff} offen{offs} {flags}")
        a(f"    s_add_u32 s{soff}, s{soff}, {STEP}")

    for p in range(2):
        loads(KB(p), sK, sOffK)
        loads(VB(p), sV, sOffV)

    a(f"    v_and_b32 v{vT}, 15, v{vLane}")
    a(f"    v_and_b32 v{vU}, 1, v{vT}")
    a(f"    v_lshrrev_b32 v{vT}, 1, v{vT}")
    a(f"    v_mov_b32 v{vX}, 0xffff")
    a(f"    v_mov_b32 v{vR}, 0xffff0000")
    a(f"    v_cmp_eq_u32 vcc, 1, v{vU}")
    a("    s_nop 1")
    a(f"    v_cndmask_b32 v{vX}, v{vX}, v{vR}, vcc")
    for r in range(4):
        a(f"    v_cmp_eq_u32 vcc, {r}, v{vT}")
        a("    s_nop 1")
        a(f"    v_cndmask_b32 v{vMask+r}, 0, v{vX}, vcc")
    a(f"    v_mov_b32 v{vM}, 0xff800000")
    a(f"    v_mov_b32 v{vMs}, 0xff800000")
    a(f"    v_mov_b32 v{vL}, 0")
    for r in range(8):
        a(f"    v_mov_b32 v{vD+r}, 0")
    a(f"    s_mov_b32 s{sCnt}, {NT // 2}")

    LANE_OF_G = [0, 8, 4, 12]
    a("L_loop:")
    for p in range(2):
        kb = KB(p); vb = VB(p)
        a("    s_waitcnt vmcnt(24)")
        for k in range(8):
            h = k >> 2; r = k & 3
            for g in range(4):
                src2 = "0" if k == 0 else f"v{vS+g}"
                a(f"    v_dot2_f32_bf16 v{vS+g}, v{kb+(g*2+h)*4+r}, v{vQ+h*4+r}, {src2}")
        loads(kb, sK, sOffK)
        a(f"    v_add_f32_dpp v{vR01}, v{vS+0}, v{vS+0} row_ror:8 row_mask:0xf bank_mask:0x3")
        a(f"    v_add_f32_dpp v{vR23}, v{vS+2}, v{vS+2} row_ror:8 row_mask:0xf bank_mask:0x3")
        a(f"    v_add_f32_dpp v{vR01}, v{vS+1}, v{vS+1} row_ror:8 row_mask:0xf bank_mask:0xc")
        a(f"    v_add_f32_dpp v{vR23}, v{vS+3}, v{vS+3} row_ror:8 row_mask:0xf bank_mask:0xc")
        a("    s_nop 0")
        a(f"    v_add_f32_dpp v{vR}, v{vR01}, v{vR01} row_shl:4 row_mask:0xf bank_mask:0x5")
        a(f"    v_add_f32_dpp v{vR}, v{vR23}, v{vR23} row_shr:4 row_mask:0xf bank_mask:0xa")
        a("    s_nop 1")
        a(f"    v_add_f32_dpp v{vR}, v{vR}, v{vR} quad_perm:[2,3,0,1] row_mask:0xf bank_mask:0xf")
        a("    s_nop 1")
        a(f"    v_add_f32_dpp v{vR}, v{vR}, v{vR} quad_perm:[1,0,3,2] row_mask:0xf bank_mask:0xf")
        a(f"    v_cmp_gt_f32 vcc, v{vR}, v{vM}")
        a(f"    s_cbranch_vccnz L_rare{p}")
        a(f"L_back{p}:")
        a(f"    v_fma_f32 v{vX}, v{vR}, s{sC}, -v{vMs}")
        a(f"    v_exp_f32 v{vX}, v{vX}")
        a("    s_nop 0")
        a(f"    v_cvt_pk_bf16_f32 v{vPP}, v{vX}, v{vX}")
        a(f"    v_add_f32 v{vL}, v{vL}, v{vX}")
        a("    s_nop 0")
        for g in range(4):
            for r in range(4):
                a(f"    v_and_b32_dpp v{vA+g*4+r}, v{vPP}, v{vMask+r} row_newbcast:{LANE_OF_G[g]} row_mask:0xf bank_mask:0xf")
        a("    s_waitcnt vmcnt(24)")
        for g in range(4):
            for h in range(2):
                d = vD + 4 * h
                b = vb + (g * 2 + h) * 4
                a(f"    v_mfma_f32_16x16x32_bf16 v[{d}:{d+3}], v[{vA+g*4}:{vA+g*4+3}], v[{b}:{b+3}], v[{d}:{d+3}]")
        loads(vb, sV, sOffV)
    a(f"    s_sub_u32 s{sCnt}, s{sCnt}, 1")
    a(f"    s_cmp_lg_u32 s{sCnt}, 0")
    a("    s_cbranch_scc1 L_loop")

    if stamps:
        a("    s_memrealtime s[32:33]")
    a("    s_load_dwordx4 s[4:7], s[0:1], 24")
    a("    s_load_dwordx2 s[8:9], s[0:1], 40")
    a(f"    v_add_f32_dpp v{vT}, v{vL}, v{vL} row_ror:4 row_mask:0xf bank_mask:0xf")
    a("    s_nop 1")
    a(f"    v_add_f32_dpp v{vT}, v{vT}, v{vT} row_ror:8 row_mask:0xf bank_mask:0xf")
    ACC0 = 0; LS0 = NW * 1024; M0_ = LS0 + NW * 16
    a(f"    v_and_b32 v{vU}, 15, v{vLane}")
    a(f"    v_lshrrev_b32 v{vX}, 4, v{vLane}")
    a(f"    v_lshlrev_b32 v{vU}, 5, v{vU}")
    a(f"    v_lshl_add_u32 v{vU}, v{vX}, 4, v{vU}")
    a(f"    s_lshl_b32 s26, s{sWave}, 10")
    a(f"    v_add_u32 v{vU}, s26, v{vU}")
    a(f"    s_lshl_b32 s26, s{sWave}, 4")
    a(f"    s_add_u32 s26, s26, {LS0}")
    a(f"    v_lshl_add_u32 v{vX}, v{vX}, 2, s26")
    a(f"    s_lshl_b32 s26, s{sWave}, 2")
    a(f"    s_add_u32 s26, s26, {M0_}")
    a(f"    v_mov_b32 v{vR}, s26")
    a(f"    ds_write_b32 v{vX}, v{vT}")
    a(f"    ds_write_b32 v{vR}, v{vMs}")
    a("    s_mov_b32 exec_hi, 0")
    a(f"    ds_write_b128 v{vU}, v[{vD}:{vD+3}]")
    a(f"    ds_write_b128 v{vU}, v[{vD+4}:{vD+7}] offset:512")
    a("    s_mov_b32 exec_hi, -1")
    a("    s_waitcnt lgkmcnt(0)")
    a("    s_barrier")
    a(f"    s_cmp_lg_u32 s{sWave}, 0")
    a("    s_cbranch_scc1 L_done_stamp")
    a("    s_waitcnt vmcnt(0)")
    e = vKV
    a(f"    v_lshlrev_b32 v{vU}, 4, v{vLane}")
    a(f"    v_mov_b32 v{vX}, 0")
    for w in range(NW):
        a(f"    ds_read_b128 v[{e+4*w}:{e+4*w+3}], v{vU} offset:{w*1024}")
    eL = e + 4 * NW
    for w in range(NW):
        a(f"    ds_read_b128 v[{eL+4*w}:{eL+4*w+3}], v{vX} offset:{LS0 + w*16}")
    eM = eL + 4 * NW
    for w4 in range(NW // 4):
        a(f"    ds_read_b128 v[{eM+4*w4}:{eM+4*w4+3}], v{vX} offset:{M0_ + w4*16}")
    a("    s_waitcnt lgkmcnt(0)")
    a(f"    v_max_f32 v{vM}, v{eM}, v{eM+1}")
    for w in range(2, NW):
        a(f"    v_max_f32 v{vM}, v{vM}, v{eM+w}")
    for w in range(NW):
        a(f"    v_sub_f32 v{eM+w}, v{eM+w}, v{vM}")
    for w in range(NW):
        a(f"    v_exp_f32 v{eM+w}, v{eM+w}")
    for w in range(NW):
        a(f"    v_add_f32 v{eL+4*w}, v{eL+4*w}, v{eL+4*w+1}")
        a(f"    v_add_f32 v{eL+4*w+2}, v{eL+4*w+2}, v{eL+4*w+3}")
    for w in range(NW):
        a(f"    v_add_f32 v{eL+4*w}, v{eL+4*w}, v{eL+4*w+2}")
    a(f"    v_mul_f32 v{vL}, v{eL}, v{eM}")
    for w in range(1, NW):
        a(f"    v_fma_f32 v{vL}, v{eL+4*w}, v{eM+w}, v{vL}")
    for c in range(4):
        a(f"    v_mul_f32 v{vD+c}, v{e+c}, v{eM}")
    for w in range(1, NW):
        for c in range(4):
            a(f"    v_fma_f32 v{vD+c}, v{e+4*w+c}, v{eM+w}, v{vD+c}")
    a("    s_waitcnt lgkmcnt(0)")
    a("    s_lshl_b32 s26, s2, 11")
    a("    s_add_u32 s10, s8, s26")
    a("    s_addc_u32 s11, s9, 0")
    a(f"    v_mov_b32 v{vD+4}, v{vM}")
    a(f"    v_mov_b32 v{vD+5}, v{vL}")
    a(f"    global_store_dwordx4 v{vU}, v[{vD}:{vD+3}], s[10:11] sc1")
    a(f"    v_mov_b32 v{vX}, 0")
    a("    s_mov_b64 exec, 1")
    a(f"    global_store_dwordx2 v{vX}, v[{vD+4}:{vD+5}], s[10:11] offset:1024 sc1")
    a("    s_waitcnt vmcnt(0)")
    a(f"    s_lshl_b32 s26, s{sHead}, 2")
    a(f"    v_mov_b32 v{vT}, s26")
    a(f"    v_mov_b32 v{vR}, 1")
    a(f"    global_atomic_add v{vR01}, v{vT}, v{vR}, s[6:7] sc0")
    a("    s_waitcnt vmcnt(0)")
    a(f"    v_readfirstlane_b32 s26, v{vR01}")
    a("    s_mov_b64 exec, -1")
    a(f"    s_cmp_lg_u32 s26, {WPH-1}")
    a("    s_cbranch_scc1 L_done_stamp")
    eL = e + 4 * WPH
    a(f"    s_lshl_b32 s26, s{sHead}, {11 + WPH.bit_length() - 1}")
    a("    s_add_u32 s10, s8, s26")
    a("    s_addc_u32 s11, s9, 0")
    for j in range(WPH):
        a(f"    v_add_u32 v{vT}, {j*2048}, v{vU}")
        a(f"    global_load_dwordx4 v[{e+4*j}:{e+4*j+3}], v{vT}, s[10:11] sc1")
        a(f"    v_mov_b32 v{vT}, {j*2048 + 1024}")
        a(f"    global_load_dwordx2 v[{eL+2*j}:{eL+2*j+1}], v{vT}, s[10:11] sc1")
    a("    s_waitcnt vmcnt(0)")
    a(f"    v_max_f32 v{vM}, v{eL}, v{eL+2}")
    for j in range(2, WPH):
        a(f"    v_max_f32 v{vM}, v{vM}, v{eL+2*j}")
    for j in range(WPH):
        a(f"    v_sub_f32 v{eL+2*j}, v{eL+2*j}, v{vM}")
    for j in range(WPH):
        a(f"    v_exp_f32 v{eL+2*j}, v{eL+2*j}")
    a("    s_nop 0")
    a(f"    v_mul_f32 v{vL}, v{eL}, v{eL+1}")
    for j in range(1, WPH):
        a(f"    v_fma_f32 v{vL}, v{eL+2*j}, v{eL+2*j+1}, v{vL}")
    for c in range(4):
        a(f"    v_mul_f32 v{vD+c}, v{e+c}, v{eL}")
    for j in range(1, WPH):
        for c in range(4):
            a(f"    v_fma_f32 v{vD+c}, v{e+4*j+c}, v{eL+2*j}, v{vD+c}")
    a(f"    v_rcp_f32 v{vL}, v{vL}")
    a("    s_nop 0")
    for c in range(4):
        a(f"    v_mul_f32 v{vD+c}, v{vD+c}, v{vL}")
    a(f"    v_cvt_pk_bf16_f32 v{vD+4}, v{vD}, v{vD+1}")
    a(f"    v_cvt_pk_bf16_f32 v{vD+5}, v{vD+2}, v{vD+3}")
    a(f"    s_lshl_b32 s26, s{sHead}, 9")
    a("    s_add_u32 s4, s4, s26")
    a("    s_addc_u32 s5, s5, 0")
    a(f"    v_lshlrev_b32 v{vT}, 3, v{vLane}")
    a(f"    global_store_dwordx2 v{vT}, v[{vD+4}:{vD+5}], s[4:5]")
    a("L_done_stamp:")
    if stamps:
        a("    s_memrealtime s[34:35]")
        a("    s_waitcnt lgkmcnt(0)")
        a(f"    s_mul_i32 s36, s2, {NW}")
        a(f"    s_add_u32 s36, s36, s{sWave}")
        a("    s_lshl_b32 s36, s36, 4")
        a("    s_add_u32 s36, s36, 0x400000")
        a("    v_mov_b32 v60, s30")
        a("    v_mov_b32 v61, s31")
        a("    v_mov_b32 v62, s34")
        a("    v_mov_b32 v63, s35")
        a("    v_mov_b32 v59, s36")
        a("    s_waitcnt vmcnt(0)")
        a("    global_store_dwordx4 v59, v[60:63], s[8:9]")
    a("L_done:")
    a("    s_endpgm")

    for p in range(2):
        a(f"L_rare{p}:")
        a(f"    v_max_f32_dpp v{vT}, v{vR}, v{vR} row_ror:4 row_mask:0xf bank_mask:0xf")
        a("    s_nop 1")
        a(f"    v_max_f32_dpp v{vT}, v{vT}, v{vT} row_ror:8 row_mask:0xf bank_mask:0xf")
        a("    s_nop 1")
        for i in range(4):
            a(f"    v_readlane_b32 s{40+i}, v{vT}, {16*i}")
        a("    s_nop 1")
        a(f"    v_max_f32 v{vT}, s40, v{vM}")
        a(f"    v_max_f32 v{vT}, s41, v{vT}")
        a(f"    v_max_f32 v{vT}, s42, v{vT}")
        a(f"    v_max_f32 v{vT}, s43, v{vT}")
        a(f"    v_sub_f32 v{vU}, v{vM}, v{vT}")
        a(f"    v_mul_f32 v{vU}, s{sC}, v{vU}")
        a(f"    v_exp_f32 v{vU}, v{vU}")
        a(f"    v_mov_b32 v{vM}, v{vT}")
        a(f"    v_mul_f32 v{vMs}, s{sC}, v{vT}")
        a(f"    v_mul_f32 v{vL}, v{vL}, v{vU}")
        for r in range(8):
            a(f"    v_mul_f32 v{vD+r}, v{vD+r}, v{vU}")
        a(f"    s_branch L_back{p}")

    a('.section .rodata,"a"')
    a(".p2align 6")
    a(f".amdhsa_kernel {KNAME}")
    a(f"  .amdhsa_next_free_vgpr {NV}")
    a("  .amdhsa_next_free_sgpr 64")
    a(f"  .amdhsa_accum_offset {(NV + 3) // 4 * 4}")
    a("  .amdhsa_group_segment_fixed_size 0")
    a("  .amdhsa_kernarg_size 48")
    a("  .amdhsa_user_sgpr_count 2")
    a("  .amdhsa_user_sgpr_kernarg_segment_ptr 1")
    a("  .amdhsa_system_sgpr_workgroup_id_x 1")
    a(".end_amdhsa_kernel")
    return "\n".join(o) + "\n"

if __name__ == "__main__":
    out = sys.argv[1]
    kw = eval("dict(" + (sys.argv[2] if len(sys.argv) > 2 else "") + ")")
    open(out, "w").write(gen(**kw))
```

```python
import sys, struct

KNAME = "standalone__softmax_full_bidir__decode_kernel"
HEADER_COMMENTS = """; Kernarg layout for this problem (48 bytes, ptrs only, base s[0:1]):
"""

def gen(N=20, A=1, R=8, NC=3, flags="nt", stamps=False, prio=True):
    WPH = 4
    G = 64 * WPH
    REGION = 2 << 20
    NT = REGION // 8192
    NW = NC + 1
    C = 0.0625 * 1.4426950408889634
    Cbits = struct.unpack("<I", struct.pack("<f", C))[0]
    SLOT = 16384
    FL = R * SLOT
    FULL0 = FL; FREE0 = FL + 4 * R
    EP0 = FL + 8 * R
    EP0 = (EP0 + 63) // 64 * 64
    ACC0 = EP0; LS0 = ACC0 + NC * 1024; M0_ = LS0 + NC * 16
    LDS = (M0_ + 16 + 63) // 64 * 64
    assert R & (R - 1) == 0
    assert LDS <= 160 * 1024

    o = []
    a = o.append
    a(HEADER_COMMENTS.rstrip())
    a(f"; @launch grid=({G},1,1) block=({NW*64},1,1) lds={LDS}")
    a('.amdgcn_target "amdgcn-amd-amdhsa--gfx950"')
    a(".text")
    a(f".globl {KNAME}")
    a(".p2align 8")
    a(f".type {KNAME},@function")
    a(f"{KNAME}:")

    vLane = 1; vOff = 2; vAd = 3
    vQ = 4
    vM = 12; vMs = 13; vL = 14; vR = 15
    vS = 16
    vR01 = 20; vR23 = 21; vX = 22; vPP = 23
    vMask = 24
    vD = 28
    vA = 36
    vT = 52; vU = 53; vF = 54; vFa = 55
    vK = 56; vV = 88
    NV = 120
    sK = 12; sV = 16
    sOff = 20; sT = 21; sC = 23; sWave = 3; sHead = 24; sSlot = 25; sWant = 22

    a(f"    s_cmp_ge_u32 s2, {G}")
    a("    s_cbranch_scc1 L_done")
    if stamps:
        a("    s_memrealtime s[30:31]")
    a("    s_load_dwordx4 s[4:7], s[0:1], 0")
    a("    s_load_dwordx2 s[8:9], s[0:1], 16")
    a(f"    v_lshrrev_b32 v{vT}, 6, v0")
    a(f"    v_and_b32 v{vLane}, 63, v0")
    a(f"    v_readfirstlane_b32 s{sWave}, v{vT}")
    a(f"    s_lshr_b32 s{sHead}, s2, 2")
    a(f"    s_lshl_b32 s26, s2, 21")
    a(f"    s_cmp_lg_u32 s{sWave}, 0")
    a("    s_cbranch_scc1 L_consumer")

    if prio:
        a("    s_setprio 3")
    a(f"    v_lshlrev_b32 v{vOff}, 4, v{vLane}")
    a(f"    v_mov_b32 v{vT}, 0")
    a(f"    v_lshlrev_b32 v{vFa}, 2, v{vLane}")
    a(f"    v_add_u32 v{vFa}, {FL}, v{vFa}")
    a(f"    v_cmp_gt_u32 vcc, {2*R}, v{vLane}")
    a("    s_and_saveexec_b64 s[40:41], vcc")
    a(f"    ds_write_b32 v{vFa}, v{vT}")
    a("    s_mov_b64 exec, s[40:41]")
    a("    s_waitcnt lgkmcnt(0)")
    a(f"    s_add_u32 s{sK}, s6, s26")
    a(f"    s_addc_u32 s{sK+1}, s7, 0")
    a(f"    s_mov_b32 s{sK+2}, {REGION}")
    a(f"    s_mov_b32 s{sK+3}, 0x20000")
    a(f"    s_add_u32 s{sV}, s8, s26")
    a(f"    s_addc_u32 s{sV+1}, s9, 0")
    a(f"    s_mov_b32 s{sV+2}, {REGION}")
    a(f"    s_mov_b32 s{sV+3}, 0x20000")
    a(f"    s_mov_b32 s{sOff}, 0")
    a(f"    s_mov_b32 s{sSlot}, 0")
    a(f"    s_mov_b32 s{sT}, 0")
    order = []
    for b in range(0, 8, A):
        order += [("K", i) for i in range(b, b + A)]
        order += [("V", i) for i in range(b, b + A)]
    ipub = (15 + N) % 16
    lag = (15 + N) // 16
    def issue(kind, i, first_of_group):
        srd = sK if kind == "K" else sV
        ldsoff = (0 if kind == "K" else 8192) + i * 1024
        base_i = (i // 4) * 4
        return srd, ldsoff, base_i
    def tile_loads(n0, waits, publish, freecheck=None):
        cur_m0 = None
        for idx, (kind, i) in enumerate(order):
            if waits(idx):
                a(f"    s_waitcnt vmcnt({N-1})")
            if publish and idx == ipub:
                publish()
            srd = sK if kind == "K" else sV
            q4 = (i // 4) * 4
            m0val = (0 if kind == "K" else 8192) + q4 * 1024
            imm = (i - q4) * 1024
            if cur_m0 != m0val:
                a(f"    s_add_u32 m0, s{sSlot}, {m0val}")
                cur_m0 = m0val
                if q4 == 0:
                    so = f"s{sOff}"
                else:
                    so = "s27"
                    a(f"    s_add_u32 s27, s{sOff}, {q4*1024}")
                a("    s_nop 0")
                last_so = so
            offs = f" offset:{imm}" if imm else ""
            a(f"    buffer_load_dwordx4 v{vOff}, s[{srd}:{srd+3}], {last_so} offen{offs} {flags} lds")
            if freecheck and idx == 4:
                freecheck()
    def advance():
        a(f"    s_add_u32 s{sOff}, s{sOff}, 8192")
        a(f"    s_add_u32 s{sSlot}, s{sSlot}, {SLOT}")
        a(f"    s_and_b32 s{sSlot}, s{sSlot}, {R*SLOT-1}")
        a(f"    s_add_u32 s{sT}, s{sT}, 1")
    cnt = [0]
    def w_pro(idx):
        cnt[0] += 1
        return cnt[0] > N
    P = lag
    for t in range(P):
        tile_loads(0, w_pro, None)
        advance()
        if t == 0:
            a("    s_barrier")
    assert cnt[0] >= N or True
    def publish():
        a(f"    s_sub_u32 s28, s{sT}, {lag}")
        a(f"    s_and_b32 s29, s28, {R-1}")
        a(f"    s_lshl_b32 s29, s29, 2")
        a(f"    s_add_u32 s29, s29, {FULL0}")
        a(f"    s_add_u32 s28, s28, 1")
        a(f"    v_mov_b32 v{vT}, s29")
        a(f"    v_mov_b32 v{vU}, s28")
        a(f"    ds_write_b32 v{vT}, v{vU}")
    def freeread():
        a(f"    s_add_u32 s28, s{sT}, 1")
        a(f"    s_and_b32 s28, s28, {R-1}")
        a(f"    s_lshl_b32 s28, s28, 2")
        a(f"    s_add_u32 s28, s28, {FREE0}")
        a(f"    v_mov_b32 v{vFa}, s28")
        a(f"    ds_read_b32 v{vF}, v{vFa}")
    pre = cnt[0]
    a(f"    v_mov_b32 v{vF}, 0x7fffffff")
    a("L_lloop:")
    a(f"    s_sub_u32 s28, s{sT}, {R-1}")
    a("L_lfree:")
    a("    s_waitcnt lgkmcnt(0)")
    a(f"    v_cmp_le_i32 vcc, s28, v{vF}")
    a("    s_cbranch_vccnz L_lgo")
    a("    s_sleep 1")
    a(f"    ds_read_b32 v{vF}, v{vFa}")
    a("    s_branch L_lfree")
    a("L_lgo:")
    if pre < N:
        raise Exception("window larger than prologue loads; increase P")
    tile_loads(0, lambda idx: True, publish, freeread)
    advance()
    a(f"    s_cmp_lt_u32 s{sT}, {NT}")
    a("    s_cbranch_scc1 L_lloop")
    for k in range(lag):
        tp = NT - lag + k
        a(f"    s_waitcnt vmcnt({16 * (NT - 1 - tp)})")
        a(f"    v_mov_b32 v{vT}, {FULL0 + 4 * (tp & (R - 1))}")
        a(f"    v_mov_b32 v{vU}, {tp + 1}")
        a(f"    ds_write_b32 v{vT}, v{vU}")
    a("    s_waitcnt lgkmcnt(0)")
    if stamps:
        a("    s_load_dwordx2 s[8:9], s[0:1], 40")
        a("    s_branch L_done_stamp")
    a("    s_endpgm")

    a("L_consumer:")
    a(f"    v_lshrrev_b32 v{vU}, 4, v{vLane}")
    a(f"    v_and_b32 v{vT}, 15, v{vLane}")
    a(f"    v_lshlrev_b32 v{vOff}, 9, v{vU}")
    a(f"    v_lshl_add_u32 v{vOff}, v{vT}, 4, v{vOff}")
    a(f"    v_lshlrev_b32 v{vX}, 4, v{vT}")
    a(f"    s_lshl_b32 s27, s{sHead}, 9")
    a(f"    s_mov_b32 s{sC}, {Cbits:#x}")
    a("    s_waitcnt lgkmcnt(0)")
    a("    s_add_u32 s4, s4, s27")
    a("    s_addc_u32 s5, s5, 0")
    a(f"    global_load_dwordx4 v[{vQ}:{vQ+3}], v{vX}, s[4:5]")
    a(f"    global_load_dwordx4 v[{vQ+4}:{vQ+7}], v{vX}, s[4:5] offset:256")
    a(f"    v_and_b32 v{vU}, 1, v{vT}")
    a(f"    v_lshrrev_b32 v{vT}, 1, v{vT}")
    a(f"    v_mov_b32 v{vX}, 0xffff")
    a(f"    v_mov_b32 v{vR}, 0xffff0000")
    a(f"    v_cmp_eq_u32 vcc, 1, v{vU}")
    a("    s_nop 1")
    a(f"    v_cndmask_b32 v{vX}, v{vX}, v{vR}, vcc")
    for r in range(4):
        a(f"    v_cmp_eq_u32 vcc, {r}, v{vT}")
        a("    s_nop 1")
        a(f"    v_cndmask_b32 v{vMask+r}, 0, v{vX}, vcc")
    a(f"    v_mov_b32 v{vM}, 0xff800000")
    a(f"    v_mov_b32 v{vMs}, 0xff800000")
    a(f"    v_mov_b32 v{vL}, 0")
    for r in range(8):
        a(f"    v_mov_b32 v{vD+r}, 0")
    a(f"    s_sub_u32 s{sT}, s{sWave}, 1")
    a("    s_barrier")
    a("    s_waitcnt vmcnt(0)")
    LANE_OF_G = [0, 8, 4, 12]
    a("L_cloop:")
    a(f"    s_and_b32 s{sSlot}, s{sT}, {R-1}")
    a(f"    s_lshl_b32 s28, s{sSlot}, 2")
    a(f"    s_add_u32 s28, s28, {FULL0}")
    a(f"    v_mov_b32 v{vFa}, s28")
    a(f"    s_add_u32 s{sWant}, s{sT}, 1")
    a(f"    s_lshl_b32 s29, s{sSlot}, 14")
    a(f"    v_add_u32 v{vAd}, s29, v{vOff}")
    a("L_cpoll:")
    a(f"    ds_read_b32 v{vF}, v{vFa}")
    a("    s_waitcnt lgkmcnt(0)")
    a(f"    v_cmp_eq_u32 vcc, s{sWant}, v{vF}")
    a("    s_cbranch_vccnz L_cgo")
    a("    s_sleep 1")
    a("    s_branch L_cpoll")
    a("L_cgo:")
    for g in range(4):
        for h in range(2):
            r = vK + (g * 2 + h) * 4
            a(f"    ds_read_b128 v[{r}:{r+3}], v{vAd} offset:{g*2048 + h*256}")
    for g in range(4):
        for h in range(2):
            r = vV + (g * 2 + h) * 4
            a(f"    ds_read_b128 v[{r}:{r+3}], v{vAd} offset:{8192 + g*2048 + h*256}")
    a("    s_waitcnt lgkmcnt(8)")
    for k in range(8):
        h = k >> 2; r = k & 3
        for g in range(4):
            src2 = "0" if k == 0 else f"v{vS+g}"
            a(f"    v_dot2_f32_bf16 v{vS+g}, v{vK+(g*2+h)*4+r}, v{vQ+h*4+r}, {src2}")
    a("    s_waitcnt lgkmcnt(0)")
    a(f"    v_mov_b32 v{vT}, s{sWant}")
    a(f"    ds_write_b32 v{vFa}, v{vT} offset:{FREE0 - FULL0}")
    a("    s_nop 0")
    a(f"    v_add_f32_dpp v{vR01}, v{vS+0}, v{vS+0} row_ror:8 row_mask:0xf bank_mask:0x3")
    a(f"    v_add_f32_dpp v{vR23}, v{vS+2}, v{vS+2} row_ror:8 row_mask:0xf bank_mask:0x3")
    a(f"    v_add_f32_dpp v{vR01}, v{vS+1}, v{vS+1} row_ror:8 row_mask:0xf bank_mask:0xc")
    a(f"    v_add_f32_dpp v{vR23}, v{vS+3}, v{vS+3} row_ror:8 row_mask:0xf bank_mask:0xc")
    a("    s_nop 0")
    a(f"    v_add_f32_dpp v{vR}, v{vR01}, v{vR01} row_shl:4 row_mask:0xf bank_mask:0x5")
    a(f"    v_add_f32_dpp v{vR}, v{vR23}, v{vR23} row_shr:4 row_mask:0xf bank_mask:0xa")
    a("    s_nop 1")
    a(f"    v_add_f32_dpp v{vR}, v{vR}, v{vR} quad_perm:[2,3,0,1] row_mask:0xf bank_mask:0xf")
    a("    s_nop 1")
    a(f"    v_add_f32_dpp v{vR}, v{vR}, v{vR} quad_perm:[1,0,3,2] row_mask:0xf bank_mask:0xf")
    a(f"    v_cmp_gt_f32 vcc, v{vR}, v{vM}")
    a("    s_cbranch_vccnz L_rare")
    a("L_back:")
    a(f"    v_fma_f32 v{vX}, v{vR}, s{sC}, -v{vMs}")
    a(f"    v_exp_f32 v{vX}, v{vX}")
    a("    s_nop 0")
    a(f"    v_cvt_pk_bf16_f32 v{vPP}, v{vX}, v{vX}")
    a(f"    v_add_f32 v{vL}, v{vL}, v{vX}")
    a("    s_nop 0")
    for g in range(4):
        for r in range(4):
            a(f"    v_and_b32_dpp v{vA+g*4+r}, v{vPP}, v{vMask+r} row_newbcast:{LANE_OF_G[g]} row_mask:0xf bank_mask:0xf")
    a("    s_nop 1")
    for g in range(4):
        for h in range(2):
            d = vD + 4 * h
            b = vV + (g * 2 + h) * 4
            a(f"    v_mfma_f32_16x16x32_bf16 v[{d}:{d+3}], v[{vA+g*4}:{vA+g*4+3}], v[{b}:{b+3}], v[{d}:{d+3}]")
    a(f"    s_add_u32 s{sT}, s{sT}, {NC}")
    a(f"    s_cmp_lt_u32 s{sT}, {NT}")
    a("    s_cbranch_scc1 L_cloop")

    if stamps:
        a("    s_memrealtime s[32:33]")
    a("    s_load_dwordx4 s[4:7], s[0:1], 24")
    a("    s_load_dwordx2 s[8:9], s[0:1], 40")
    a(f"    s_sub_u32 s{sWave}, s{sWave}, 1")
    a(f"    v_add_f32_dpp v{vT}, v{vL}, v{vL} row_ror:4 row_mask:0xf bank_mask:0xf")
    a("    s_nop 1")
    a(f"    v_add_f32_dpp v{vT}, v{vT}, v{vT} row_ror:8 row_mask:0xf bank_mask:0xf")
    a(f"    v_and_b32 v{vU}, 15, v{vLane}")
    a(f"    v_lshrrev_b32 v{vX}, 4, v{vLane}")
    a(f"    v_lshlrev_b32 v{vU}, 5, v{vU}")
    a(f"    v_lshl_add_u32 v{vU}, v{vX}, 4, v{vU}")
    a(f"    s_lshl_b32 s26, s{sWave}, 10")
    a(f"    s_add_u32 s26, s26, {ACC0}")
    a(f"    v_add_u32 v{vU}, s26, v{vU}")
    a(f"    s_lshl_b32 s26, s{sWave}, 4")
    a(f"    s_add_u32 s26, s26, {LS0}")
    a(f"    v_lshl_add_u32 v{vX}, v{vX}, 2, s26")
    a(f"    s_lshl_b32 s26, s{sWave}, 2")
    a(f"    s_add_u32 s26, s26, {M0_}")
    a(f"    v_mov_b32 v{vR}, s26")
    a(f"    ds_write_b32 v{vX}, v{vT}")
    a(f"    ds_write_b32 v{vR}, v{vMs}")
    a("    s_nop 4")
    a("    s_mov_b32 exec_hi, 0")
    a(f"    ds_write_b128 v{vU}, v[{vD}:{vD+3}]")
    a(f"    ds_write_b128 v{vU}, v[{vD+4}:{vD+7}] offset:512")
    a("    s_mov_b32 exec_hi, -1")
    a("    s_waitcnt lgkmcnt(0)")
    a("    s_barrier")
    a(f"    s_cmp_lg_u32 s{sWave}, 0")
    a("    s_cbranch_scc1 L_done_stamp")
    e = vK
    a(f"    v_lshlrev_b32 v{vU}, 4, v{vLane}")
    a(f"    v_add_u32 v{vT}, {ACC0}, v{vU}")
    a(f"    v_mov_b32 v{vX}, {LS0}")
    for w in range(NC):
        a(f"    ds_read_b128 v[{e+4*w}:{e+4*w+3}], v{vT} offset:{w*1024}")
    eL = e + 4 * NC
    for w in range(NC):
        a(f"    ds_read_b128 v[{eL+4*w}:{eL+4*w+3}], v{vX} offset:{w*16}")
    eM = eL + 4 * NC
    a(f"    ds_read_b128 v[{eM}:{eM+3}], v{vX} offset:{M0_ - LS0}")
    a("    s_waitcnt lgkmcnt(0)")
    a(f"    v_max_f32 v{vM}, v{eM}, v{eM+1}")
    for w in range(2, NC):
        a(f"    v_max_f32 v{vM}, v{vM}, v{eM+w}")
    for w in range(NC):
        a(f"    v_sub_f32 v{eM+w}, v{eM+w}, v{vM}")
    for w in range(NC):
        a(f"    v_exp_f32 v{eM+w}, v{eM+w}")
    for w in range(NC):
        a(f"    v_add_f32 v{eL+4*w}, v{eL+4*w}, v{eL+4*w+1}")
        a(f"    v_add_f32 v{eL+4*w+2}, v{eL+4*w+2}, v{eL+4*w+3}")
    for w in range(NC):
        a(f"    v_add_f32 v{eL+4*w}, v{eL+4*w}, v{eL+4*w+2}")
    a(f"    v_mul_f32 v{vL}, v{eL}, v{eM}")
    for w in range(1, NC):
        a(f"    v_fma_f32 v{vL}, v{eL+4*w}, v{eM+w}, v{vL}")
    for c in range(4):
        a(f"    v_mul_f32 v{vD+c}, v{e+c}, v{eM}")
    for w in range(1, NC):
        for c in range(4):
            a(f"    v_fma_f32 v{vD+c}, v{e+4*w+c}, v{eM+w}, v{vD+c}")
    a("    s_lshl_b32 s26, s2, 11")
    a("    s_add_u32 s10, s8, s26")
    a("    s_addc_u32 s11, s9, 0")
    a(f"    v_mov_b32 v{vD+4}, v{vM}")
    a(f"    v_mov_b32 v{vD+5}, v{vL}")
    a(f"    global_store_dwordx4 v{vU}, v[{vD}:{vD+3}], s[10:11] sc1")
    a(f"    v_mov_b32 v{vX}, 0")
    a("    s_mov_b64 exec, 1")
    a(f"    global_store_dwordx2 v{vX}, v[{vD+4}:{vD+5}], s[10:11] offset:1024 sc1")
    a("    s_waitcnt vmcnt(0)")
    a(f"    s_lshl_b32 s26, s{sHead}, 2")
    a(f"    v_mov_b32 v{vT}, s26")
    a(f"    v_mov_b32 v{vR}, 1")
    a(f"    global_atomic_add v{vR01}, v{vT}, v{vR}, s[6:7] sc0")
    a("    s_waitcnt vmcnt(0)")
    a(f"    v_readfirstlane_b32 s26, v{vR01}")
    a("    s_mov_b64 exec, -1")
    a(f"    s_cmp_lg_u32 s26, {WPH-1}")
    a("    s_cbranch_scc1 L_done_stamp")
    eL = e + 4 * WPH
    a(f"    s_lshl_b32 s26, s{sHead}, {11 + WPH.bit_length() - 1}")
    a("    s_add_u32 s10, s8, s26")
    a("    s_addc_u32 s11, s9, 0")
    for j in range(WPH):
        a(f"    v_add_u32 v{vT}, {j*2048}, v{vU}")
        a(f"    global_load_dwordx4 v[{e+4*j}:{e+4*j+3}], v{vT}, s[10:11] sc1")
        a(f"    v_mov_b32 v{vT}, {j*2048 + 1024}")
        a(f"    global_load_dwordx2 v[{eL+2*j}:{eL+2*j+1}], v{vT}, s[10:11] sc1")
    a("    s_waitcnt vmcnt(0)")
    a(f"    v_max_f32 v{vM}, v{eL}, v{eL+2}")
    for j in range(2, WPH):
        a(f"    v_max_f32 v{vM}, v{vM}, v{eL+2*j}")
    for j in range(WPH):
        a(f"    v_sub_f32 v{eL+2*j}, v{eL+2*j}, v{vM}")
    for j in range(WPH):
        a(f"    v_exp_f32 v{eL+2*j}, v{eL+2*j}")
    a("    s_nop 0")
    a(f"    v_mul_f32 v{vL}, v{eL}, v{eL+1}")
    for j in range(1, WPH):
        a(f"    v_fma_f32 v{vL}, v{eL+2*j}, v{eL+2*j+1}, v{vL}")
    for c in range(4):
        a(f"    v_mul_f32 v{vD+c}, v{e+c}, v{eL}")
    for j in range(1, WPH):
        for c in range(4):
            a(f"    v_fma_f32 v{vD+c}, v{e+4*j+c}, v{eL+2*j}, v{vD+c}")
    a(f"    v_rcp_f32 v{vL}, v{vL}")
    a("    s_nop 0")
    for c in range(4):
        a(f"    v_mul_f32 v{vD+c}, v{vD+c}, v{vL}")
    a(f"    v_cvt_pk_bf16_f32 v{vD+4}, v{vD}, v{vD+1}")
    a(f"    v_cvt_pk_bf16_f32 v{vD+5}, v{vD+2}, v{vD+3}")
    a(f"    s_lshl_b32 s26, s{sHead}, 9")
    a("    s_add_u32 s4, s4, s26")
    a("    s_addc_u32 s5, s5, 0")
    a(f"    v_lshlrev_b32 v{vT}, 3, v{vLane}")
    a(f"    global_store_dwordx2 v{vT}, v[{vD+4}:{vD+5}], s[4:5]")
    a("L_done_stamp:")
    if stamps:
        a("    s_memrealtime s[34:35]")
        a("    s_waitcnt lgkmcnt(0) vmcnt(0)")
        a(f"    v_readfirstlane_b32 s37, v0")
        a("    s_nop 3")
        a(f"    s_lshr_b32 s37, s37, 6")
        a(f"    s_mul_i32 s36, s2, {NW}")
        a(f"    s_add_u32 s36, s36, s37")
        a("    s_lshl_b32 s36, s36, 4")
        a("    s_add_u32 s36, s36, 0x400000")
        a("    v_mov_b32 v60, s30")
        a("    v_mov_b32 v61, s31")
        a("    v_mov_b32 v62, s34")
        a("    v_mov_b32 v63, s35")
        a("    v_mov_b32 v59, s36")
        a("    global_store_dwordx4 v59, v[60:63], s[8:9]")
        a("    s_getreg_b32 s35, hwreg(HW_REG_XCC_ID)")
        a("    s_lshr_b32 s36, s36, 2")
        a("    s_add_u32 s36, s36, 0x400000")
        a("    v_mov_b32 v60, s35")
        a("    v_mov_b32 v59, s36")
        a("    global_store_dword v59, v60, s[8:9]")
    a("L_done:")
    a("    s_endpgm")

    a("L_rare:")
    a(f"    v_max_f32_dpp v{vT}, v{vR}, v{vR} row_ror:4 row_mask:0xf bank_mask:0xf")
    a("    s_nop 1")
    a(f"    v_max_f32_dpp v{vT}, v{vT}, v{vT} row_ror:8 row_mask:0xf bank_mask:0xf")
    a("    s_nop 1")
    for i in range(4):
        a(f"    v_readlane_b32 s{40+i}, v{vT}, {16*i}")
    a("    s_nop 1")
    a(f"    v_max_f32 v{vT}, s40, v{vM}")
    a(f"    v_max_f32 v{vT}, s41, v{vT}")
    a(f"    v_max_f32 v{vT}, s42, v{vT}")
    a(f"    v_max_f32 v{vT}, s43, v{vT}")
    a(f"    v_sub_f32 v{vU}, v{vM}, v{vT}")
    a(f"    v_mul_f32 v{vU}, s{sC}, v{vU}")
    a(f"    v_exp_f32 v{vU}, v{vU}")
    a(f"    v_mov_b32 v{vM}, v{vT}")
    a(f"    v_mul_f32 v{vMs}, s{sC}, v{vT}")
    a(f"    v_mul_f32 v{vL}, v{vL}, v{vU}")
    for r in range(8):
        a(f"    v_mul_f32 v{vD+r}, v{vD+r}, v{vU}")
    a("    s_branch L_back")

    a('.section .rodata,"a"')
    a(".p2align 6")
    a(f".amdhsa_kernel {KNAME}")
    a(f"  .amdhsa_next_free_vgpr {NV}")
    a("  .amdhsa_next_free_sgpr 64")
    a(f"  .amdhsa_accum_offset {(NV + 3) // 4 * 4}")
    a("  .amdhsa_group_segment_fixed_size 0")
    a("  .amdhsa_kernarg_size 48")
    a("  .amdhsa_user_sgpr_count 2")
    a("  .amdhsa_user_sgpr_kernarg_segment_ptr 1")
    a("  .amdhsa_system_sgpr_workgroup_id_x 1")
    a(".end_amdhsa_kernel")
    return "\n".join(o) + "\n"

if __name__ == "__main__":
    out = sys.argv[1]
    kw = eval("dict(" + (sys.argv[2] if len(sys.argv) > 2 else "") + ")")
    open(out, "w").write(gen(**kw))
```

```python
import sys, struct

KNAME = "standalone__softmax_full_bidir__decode_kernel"
HEADER_COMMENTS = """; Kernarg layout for this problem (48 bytes, ptrs only, base s[0:1]):
"""

def gen(N=20, A=8, R=8, NC=3, flags="nt", stamps=False, prio=True, N2=None, F=0, safe=False, st2=False):
    WPH = 4
    G = 64 * WPH
    REGION = 2 << 20
    NT = REGION // 8192
    NW = NC + 1
    C = 0.0625 * 1.4426950408889634
    Cbits = struct.unpack("<I", struct.pack("<f", C))[0]
    SLOT = 16384
    FL = R * SLOT
    FULL0 = FL; FREE0 = FL + 4 * R
    EP0 = FL + 8 * R
    EP0 = (EP0 + 63) // 64 * 64
    ACC0 = EP0; LS0 = ACC0 + NC * 1024; M0_ = LS0 + NC * 16
    LDS = (M0_ + 16 + 63) // 64 * 64
    assert R & (R - 1) == 0
    assert LDS <= 160 * 1024

    o = []
    a = o.append
    def sleep(n):
        a(f"    s_sleep {n}")
        if safe:
            a("    s_sub_u32 s46, s46, 1")
            a("    s_cbranch_scc1 L_done")
    a(HEADER_COMMENTS.rstrip())
    a(f"; @launch grid=({G},1,1) block=({NW*64},1,1) lds={LDS}")
    a('.amdgcn_target "amdgcn-amd-amdhsa--gfx950"')
    a(".text")
    a(f".globl {KNAME}")
    a(".p2align 8")
    a(f".type {KNAME},@function")
    a(f"{KNAME}:")

    vLane = 1; vOff = 2; vAd = 3
    vQ = 4
    vM = 12; vMs = 13; vL = 14; vR = 15
    vS = 16
    vR01 = 20; vR23 = 21; vX = 22; vPP = 23
    vMask = 24
    vD = 28
    vA = 36
    vT = 52; vU = 53; vF = 54; vFa = 55
    vK = 56; vV = 88
    NV = 120
    sK = 12; sV = 16
    sOff = 20; sT = 21; sC = 23; sWave = 3; sHead = 24; sSlot = 25; sWant = 22

    a(f"    s_cmp_ge_u32 s2, {G}")
    a("    s_cbranch_scc1 L_done")
    if stamps:
        a("    s_memrealtime s[30:31]")
    if safe:
        a("    s_mov_b32 s46, 2000000")
    a("    s_load_dwordx4 s[4:7], s[0:1], 0")
    a("    s_load_dwordx2 s[8:9], s[0:1], 16")
    a(f"    v_lshrrev_b32 v{vT}, 6, v0")
    a(f"    v_and_b32 v{vLane}, 63, v0")
    a(f"    v_readfirstlane_b32 s{sWave}, v{vT}")
    a(f"    s_lshr_b32 s{sHead}, s2, 2")
    a(f"    s_lshl_b32 s26, s2, 21")
    a(f"    s_cmp_lg_u32 s{sWave}, 0")
    a("    s_cbranch_scc1 L_consumer")

    if prio:
        a("    s_setprio 3")
    a(f"    v_lshlrev_b32 v{vOff}, 4, v{vLane}")
    a(f"    v_mov_b32 v{vT}, 0")
    a(f"    v_lshlrev_b32 v{vFa}, 2, v{vLane}")
    a(f"    v_add_u32 v{vFa}, {FL}, v{vFa}")
    a(f"    v_cmp_gt_u32 vcc, {2*R}, v{vLane}")
    a("    s_and_saveexec_b64 s[40:41], vcc")
    a(f"    ds_write_b32 v{vFa}, v{vT}")
    a("    s_mov_b64 exec, s[40:41]")
    a(f"    s_mov_b32 s{sOff}, 0")
    a(f"    s_mov_b32 s{sSlot}, 0")
    a(f"    s_mov_b32 s{sT}, 0")
    a("    s_waitcnt lgkmcnt(0)")
    a(f"    s_add_u32 s{sK}, s6, s26")
    a(f"    s_addc_u32 s{sK+1}, s7, 0")
    a(f"    s_mov_b32 s{sK+2}, {REGION}")
    a(f"    s_mov_b32 s{sK+3}, 0x20000")
    a(f"    s_add_u32 s{sV}, s8, s26")
    a(f"    s_addc_u32 s{sV+1}, s9, 0")
    a(f"    s_mov_b32 s{sV+2}, {REGION}")
    a(f"    s_mov_b32 s{sV+3}, 0x20000")
    order = []
    for b in range(0, 8, A):
        order += [("K", i) for i in range(b, b + A)]
        order += [("V", i) for i in range(b, b + A)]
    lag = (15 + N) // 16
    W = {"N": N}
    def setN(n):
        assert (15 + n) % 16 != 15
        W["N"] = n
    setN(N)
    vPa = 8; vPv = 9; vFr = 10
    sThr = 47
    def setup(idx):
        kind, i = order[idx]
        q4 = (i // 4) * 4
        return (0 if kind == "K" else 8192) + q4 * 1024, q4
    def tile_loads(waits, publish, gaps=None):
        gaps = gaps or {}
        cur = None
        def emit_setup(idx):
            nonlocal cur
            m0val, q4 = setup(idx)
            if cur != m0val:
                a(f"    s_add_u32 m0, s{sSlot}, {m0val}")
                if q4 != 0:
                    a(f"    s_add_u32 s27, s{sOff}, {q4*1024}")
                cur = m0val
                return True
            return False
        changed = emit_setup(0)
        for idx, (kind, i) in enumerate(order):
            w = waits(idx)
            if w:
                a(f"    s_waitcnt vmcnt({W['N']-1})")
            elif changed:
                a("    s_nop 0")
            srd = sK if kind == "K" else sV
            q4 = (i // 4) * 4
            imm = (i - q4) * 1024
            so = f"s{sOff}" if q4 == 0 else "s27"
            offs = f" offset:{imm}" if imm else ""
            a(f"    buffer_load_dwordx4 v{vOff}, s[{srd}:{srd+3}], {so} offen{offs} {flags} lds")
            if publish and idx == (15 + W["N"]) % 16:
                publish()
            if idx in gaps:
                gaps[idx]()
            changed = False
            if idx + 1 < 16:
                changed = emit_setup(idx + 1)
    def advance():
        a(f"    s_add_u32 s{sOff}, s{sOff}, 8192")
        a(f"    s_add_u32 s{sSlot}, s{sSlot}, {SLOT}")
        a(f"    s_and_b32 s{sSlot}, s{sSlot}, {R*SLOT-1}")
        a(f"    s_add_u32 s{sT}, s{sT}, 1")
    cnt = [0]
    def w_pro(idx):
        cnt[0] += 1
        return cnt[0] > N
    P = lag
    assert (FULL0 % (4 * R)) == 0 and (FREE0 % (4 * R)) == 0
    if st2:
        a("    s_memrealtime s[48:49]")
    for t in range(P):
        tile_loads(w_pro, None)
        advance()
        if t == 0:
            a("    s_barrier")
    if st2:
        a("    s_memrealtime s[50:51]")
        a("    s_waitcnt lgkmcnt(0)")
    assert cnt[0] >= N
    a(f"    v_mov_b32 v{vPa}, {FULL0 + 4 * ((P - lag) & (R - 1))}")
    a(f"    v_mov_b32 v{vPv}, {P - lag + 1}")
    a(f"    v_mov_b32 v{vFr}, {FREE0 + 4 * ((P + 1) & (R - 1))}")
    a(f"    s_mov_b32 s{sThr}, {P - (R - 1)}")
    def wrapinc(reg, base):
        a(f"    v_add_u32 v{reg}, 4, v{reg}")
        a(f"    v_and_b32 v{reg}, {4 * R - 1}, v{reg}")
        a(f"    v_or_b32 v{reg}, {base}, v{reg}")
    def publish():
        a(f"    ds_write_b32 v{vPa}, v{vPv}")
    def pubnext():
        a(f"    v_add_u32 v{vPv}, 1, v{vPv}")
        wrapinc(vPa, FULL0)
    def freeread():
        a(f"    ds_read_b32 v{vF}, v{vFr}")
        a(f"    v_mov_b32 v{vFa}, v{vFr}")
        wrapinc(vFr, FREE0)
    def freecheck(tag):
        a(f"L_lfree{tag}:")
        a("    s_waitcnt lgkmcnt(0)")
        a(f"    v_cmp_le_i32 vcc, s{sThr}, v{vF}")
        a(f"    s_cbranch_vccnz L_lgo{tag}")
        sleep(1)
        a(f"    ds_read_b32 v{vF}, v{vFa}")
        a(f"    s_branch L_lfree{tag}")
        a(f"L_lgo{tag}:")
        a(f"    s_add_u32 s{sThr}, s{sThr}, 1")
    def gaps():
        ipub = (15 + W["N"]) % 16
        g_pub = ipub + 1
        fs = [x for x in range(15) if x not in (ipub, g_pub)]
        return {g_pub: pubnext, fs[6]: freeread}
    a(f"    v_mov_b32 v{vF}, 0x7fffffff")
    a("L_lloop:")
    freecheck("s")
    tile_loads(lambda idx: True, publish, gaps())
    advance()
    a(f"    s_cmp_lt_u32 s{sT}, {NT - F}")
    a("    s_cbranch_scc1 L_lloop")
    lagF = lag
    if F > 0:
        setN(N2 or N)
        lagF = (15 + W["N"]) // 16
        assert lagF >= lag and F > lagF - lag
        for x in range(lagF - lag):
            freecheck(f"x{x}")
            g = gaps()
            g = {k: v for k, v in g.items() if v is freeread}
            tile_loads(lambda idx: True, None, g)
            advance()
        a("L_ploop:")
        freecheck("p")
        tile_loads(lambda idx: True, publish, gaps())
        advance()
        a(f"    s_cmp_lt_u32 s{sT}, {NT}")
        a("    s_cbranch_scc1 L_ploop")
    lag = lagF
    for k in range(lag):
        a(f"    s_waitcnt vmcnt({16 * (lag - 1 - k)})")
        publish()
        pubnext()
    a("    s_waitcnt lgkmcnt(0)")
    if stamps:
        a("    s_load_dwordx2 s[8:9], s[0:1], 40")
        if st2:
            a("    s_waitcnt lgkmcnt(0)")
            a("    s_lshl_b32 s36, s2, 5")
            a("    s_add_u32 s36, s36, 0x600000")
            a("    v_mov_b32 v60, s30")
            a("    v_mov_b32 v61, s31")
            a("    v_mov_b32 v62, s48")
            a("    v_mov_b32 v63, s49")
            a("    v_mov_b32 v59, s36")
            a("    global_store_dwordx4 v59, v[60:63], s[8:9]")
            a("    v_mov_b32 v64, s50")
            a("    v_mov_b32 v65, s51")
            a("    global_store_dwordx2 v59, v[64:65], s[8:9] offset:16")
        a("    s_branch L_done_stamp")
    a("    s_endpgm")

    a("L_consumer:")
    a(f"    v_lshrrev_b32 v{vU}, 4, v{vLane}")
    a(f"    v_and_b32 v{vT}, 15, v{vLane}")
    a(f"    v_lshlrev_b32 v{vOff}, 9, v{vU}")
    a(f"    v_lshl_add_u32 v{vOff}, v{vT}, 4, v{vOff}")
    a(f"    v_lshlrev_b32 v{vX}, 4, v{vT}")
    a(f"    s_lshl_b32 s27, s{sHead}, 9")
    a(f"    s_mov_b32 s{sC}, {Cbits:#x}")
    a("    s_waitcnt lgkmcnt(0)")
    a("    s_add_u32 s4, s4, s27")
    a("    s_addc_u32 s5, s5, 0")
    a(f"    global_load_dwordx4 v[{vQ}:{vQ+3}], v{vX}, s[4:5]")
    a(f"    global_load_dwordx4 v[{vQ+4}:{vQ+7}], v{vX}, s[4:5] offset:256")
    a(f"    v_and_b32 v{vU}, 1, v{vT}")
    a(f"    v_lshrrev_b32 v{vT}, 1, v{vT}")
    a(f"    v_mov_b32 v{vX}, 0xffff")
    a(f"    v_mov_b32 v{vR}, 0xffff0000")
    a(f"    v_cmp_eq_u32 vcc, 1, v{vU}")
    a("    s_nop 1")
    a(f"    v_cndmask_b32 v{vX}, v{vX}, v{vR}, vcc")
    for r in range(4):
        a(f"    v_cmp_eq_u32 vcc, {r}, v{vT}")
        a("    s_nop 1")
        a(f"    v_cndmask_b32 v{vMask+r}, 0, v{vX}, vcc")
    a(f"    v_mov_b32 v{vM}, 0xff800000")
    a(f"    v_mov_b32 v{vMs}, 0xff800000")
    a(f"    v_mov_b32 v{vL}, 0")
    for r in range(8):
        a(f"    v_mov_b32 v{vD+r}, 0")
    a(f"    s_sub_u32 s{sT}, s{sWave}, 1")
    a("    s_barrier")
    a("    s_waitcnt vmcnt(0)")
    LANE_OF_G = [0, 8, 4, 12]
    a("L_cloop:")
    a(f"    s_and_b32 s{sSlot}, s{sT}, {R-1}")
    a(f"    s_lshl_b32 s28, s{sSlot}, 2")
    a(f"    s_add_u32 s28, s28, {FULL0}")
    a(f"    v_mov_b32 v{vFa}, s28")
    a(f"    s_add_u32 s{sWant}, s{sT}, 1")
    a(f"    s_lshl_b32 s29, s{sSlot}, 14")
    a(f"    v_add_u32 v{vAd}, s29, v{vOff}")
    a("L_cpoll:")
    a(f"    ds_read_b32 v{vF}, v{vFa}")
    a("    s_waitcnt lgkmcnt(0)")
    a(f"    v_cmp_eq_u32 vcc, s{sWant}, v{vF}")
    a("    s_cbranch_vccnz L_cgo")
    sleep(1)
    a("    s_branch L_cpoll")
    a("L_cgo:")
    for g in range(4):
        for h in range(2):
            r = vK + (g * 2 + h) * 4
            a(f"    ds_read_b128 v[{r}:{r+3}], v{vAd} offset:{g*2048 + h*256}")
    for g in range(4):
        for h in range(2):
            r = vV + (g * 2 + h) * 4
            a(f"    ds_read_b128 v[{r}:{r+3}], v{vAd} offset:{8192 + g*2048 + h*256}")
    a("    s_waitcnt lgkmcnt(8)")
    for k in range(8):
        h = k >> 2; r = k & 3
        for g in range(4):
            src2 = "0" if k == 0 else f"v{vS+g}"
            a(f"    v_dot2_f32_bf16 v{vS+g}, v{vK+(g*2+h)*4+r}, v{vQ+h*4+r}, {src2}")
    a("    s_waitcnt lgkmcnt(0)")
    a(f"    v_mov_b32 v{vT}, s{sWant}")
    a(f"    ds_write_b32 v{vFa}, v{vT} offset:{FREE0 - FULL0}")
    a("    s_nop 0")
    a(f"    v_add_f32_dpp v{vR01}, v{vS+0}, v{vS+0} row_ror:8 row_mask:0xf bank_mask:0x3")
    a(f"    v_add_f32_dpp v{vR23}, v{vS+2}, v{vS+2} row_ror:8 row_mask:0xf bank_mask:0x3")
    a(f"    v_add_f32_dpp v{vR01}, v{vS+1}, v{vS+1} row_ror:8 row_mask:0xf bank_mask:0xc")
    a(f"    v_add_f32_dpp v{vR23}, v{vS+3}, v{vS+3} row_ror:8 row_mask:0xf bank_mask:0xc")
    a("    s_nop 0")
    a(f"    v_add_f32_dpp v{vR}, v{vR01}, v{vR01} row_shl:4 row_mask:0xf bank_mask:0x5")
    a(f"    v_add_f32_dpp v{vR}, v{vR23}, v{vR23} row_shr:4 row_mask:0xf bank_mask:0xa")
    a("    s_nop 1")
    a(f"    v_add_f32_dpp v{vR}, v{vR}, v{vR} quad_perm:[2,3,0,1] row_mask:0xf bank_mask:0xf")
    a("    s_nop 1")
    a(f"    v_add_f32_dpp v{vR}, v{vR}, v{vR} quad_perm:[1,0,3,2] row_mask:0xf bank_mask:0xf")
    a(f"    v_cmp_gt_f32 vcc, v{vR}, v{vM}")
    a("    s_cbranch_vccnz L_rare")
    a("L_back:")
    a(f"    v_fma_f32 v{vX}, v{vR}, s{sC}, -v{vMs}")
    a(f"    v_exp_f32 v{vX}, v{vX}")
    a("    s_nop 0")
    a(f"    v_cvt_pk_bf16_f32 v{vPP}, v{vX}, v{vX}")
    a(f"    v_add_f32 v{vL}, v{vL}, v{vX}")
    a("    s_nop 0")
    for g in range(4):
        for r in range(4):
            a(f"    v_and_b32_dpp v{vA+g*4+r}, v{vPP}, v{vMask+r} row_newbcast:{LANE_OF_G[g]} row_mask:0xf bank_mask:0xf")
    a("    s_nop 1")
    for g in range(4):
        for h in range(2):
            d = vD + 4 * h
            b = vV + (g * 2 + h) * 4
            a(f"    v_mfma_f32_16x16x32_bf16 v[{d}:{d+3}], v[{vA+g*4}:{vA+g*4+3}], v[{b}:{b+3}], v[{d}:{d+3}]")
    a(f"    s_add_u32 s{sT}, s{sT}, {NC}")
    a(f"    s_cmp_lt_u32 s{sT}, {NT}")
    a("    s_cbranch_scc1 L_cloop")

    if stamps:
        a("    s_memrealtime s[32:33]")
    a("    s_load_dwordx4 s[4:7], s[0:1], 24")
    a("    s_load_dwordx2 s[8:9], s[0:1], 40")
    a(f"    s_sub_u32 s{sWave}, s{sWave}, 1")
    a(f"    v_add_f32_dpp v{vT}, v{vL}, v{vL} row_ror:4 row_mask:0xf bank_mask:0xf")
    a("    s_nop 1")
    a(f"    v_add_f32_dpp v{vT}, v{vT}, v{vT} row_ror:8 row_mask:0xf bank_mask:0xf")
    a(f"    v_and_b32 v{vU}, 15, v{vLane}")
    a(f"    v_lshrrev_b32 v{vX}, 4, v{vLane}")
    a(f"    v_lshlrev_b32 v{vU}, 5, v{vU}")
    a(f"    v_lshl_add_u32 v{vU}, v{vX}, 4, v{vU}")
    a(f"    s_lshl_b32 s26, s{sWave}, 10")
    a(f"    s_add_u32 s26, s26, {ACC0}")
    a(f"    v_add_u32 v{vU}, s26, v{vU}")
    a(f"    s_lshl_b32 s26, s{sWave}, 4")
    a(f"    s_add_u32 s26, s26, {LS0}")
    a(f"    v_lshl_add_u32 v{vX}, v{vX}, 2, s26")
    a(f"    s_lshl_b32 s26, s{sWave}, 2")
    a(f"    s_add_u32 s26, s26, {M0_}")
    a(f"    v_mov_b32 v{vR}, s26")
    a(f"    ds_write_b32 v{vX}, v{vT}")
    a(f"    ds_write_b32 v{vR}, v{vMs}")
    a("    s_nop 4")
    a("    s_mov_b32 exec_hi, 0")
    a(f"    ds_write_b128 v{vU}, v[{vD}:{vD+3}]")
    a(f"    ds_write_b128 v{vU}, v[{vD+4}:{vD+7}] offset:512")
    a("    s_mov_b32 exec_hi, -1")
    a("    s_waitcnt lgkmcnt(0)")
    a("    s_barrier")
    a(f"    s_cmp_lg_u32 s{sWave}, 0")
    a("    s_cbranch_scc1 L_done_stamp")
    e = vK
    a(f"    v_lshlrev_b32 v{vU}, 4, v{vLane}")
    a(f"    v_add_u32 v{vT}, {ACC0}, v{vU}")
    a(f"    v_mov_b32 v{vX}, {LS0}")
    for w in range(NC):
        a(f"    ds_read_b128 v[{e+4*w}:{e+4*w+3}], v{vT} offset:{w*1024}")
    eL = e + 4 * NC
    for w in range(NC):
        a(f"    ds_read_b128 v[{eL+4*w}:{eL+4*w+3}], v{vX} offset:{w*16}")
    eM = eL + 4 * NC
    a(f"    ds_read_b128 v[{eM}:{eM+3}], v{vX} offset:{M0_ - LS0}")
    a("    s_waitcnt lgkmcnt(0)")
    a(f"    v_max_f32 v{vM}, v{eM}, v{eM+1}")
    for w in range(2, NC):
        a(f"    v_max_f32 v{vM}, v{vM}, v{eM+w}")
    for w in range(NC):
        a(f"    v_sub_f32 v{eM+w}, v{eM+w}, v{vM}")
    for w in range(NC):
        a(f"    v_exp_f32 v{eM+w}, v{eM+w}")
    for w in range(NC):
        a(f"    v_add_f32 v{eL+4*w}, v{eL+4*w}, v{eL+4*w+1}")
        a(f"    v_add_f32 v{eL+4*w+2}, v{eL+4*w+2}, v{eL+4*w+3}")
    for w in range(NC):
        a(f"    v_add_f32 v{eL+4*w}, v{eL+4*w}, v{eL+4*w+2}")
    a(f"    v_mul_f32 v{vL}, v{eL}, v{eM}")
    for w in range(1, NC):
        a(f"    v_fma_f32 v{vL}, v{eL+4*w}, v{eM+w}, v{vL}")
    for c in range(4):
        a(f"    v_mul_f32 v{vD+c}, v{e+c}, v{eM}")
    for w in range(1, NC):
        for c in range(4):
            a(f"    v_fma_f32 v{vD+c}, v{e+4*w+c}, v{eM+w}, v{vD+c}")
    a("    s_lshl_b32 s26, s2, 11")
    a("    s_add_u32 s10, s8, s26")
    a("    s_addc_u32 s11, s9, 0")
    a(f"    v_mov_b32 v{vD+4}, v{vM}")
    a(f"    v_mov_b32 v{vD+5}, v{vL}")
    a(f"    global_store_dwordx4 v{vU}, v[{vD}:{vD+3}], s[10:11] sc1")
    a(f"    v_mov_b32 v{vX}, 0")
    a("    s_mov_b64 exec, 1")
    a(f"    global_store_dwordx2 v{vX}, v[{vD+4}:{vD+5}], s[10:11] offset:1024 sc1")
    a("    s_waitcnt vmcnt(0)")
    a(f"    s_lshl_b32 s26, s{sHead}, 2")
    a(f"    v_mov_b32 v{vT}, s26")
    a(f"    v_mov_b32 v{vR}, 1")
    a(f"    global_atomic_add v{vR01}, v{vT}, v{vR}, s[6:7] sc0")
    a("    s_waitcnt vmcnt(0)")
    a(f"    v_readfirstlane_b32 s26, v{vR01}")
    a("    s_mov_b64 exec, -1")
    a(f"    s_cmp_lg_u32 s26, {WPH-1}")
    a("    s_cbranch_scc1 L_done_stamp")
    eL = e + 4 * WPH
    a(f"    s_lshl_b32 s26, s{sHead}, {11 + WPH.bit_length() - 1}")
    a("    s_add_u32 s10, s8, s26")
    a("    s_addc_u32 s11, s9, 0")
    for j in range(WPH):
        a(f"    v_add_u32 v{vT}, {j*2048}, v{vU}")
        a(f"    global_load_dwordx4 v[{e+4*j}:{e+4*j+3}], v{vT}, s[10:11] sc1")
        a(f"    v_mov_b32 v{vT}, {j*2048 + 1024}")
        a(f"    global_load_dwordx2 v[{eL+2*j}:{eL+2*j+1}], v{vT}, s[10:11] sc1")
    a("    s_waitcnt vmcnt(0)")
    a(f"    v_max_f32 v{vM}, v{eL}, v{eL+2}")
    for j in range(2, WPH):
        a(f"    v_max_f32 v{vM}, v{vM}, v{eL+2*j}")
    for j in range(WPH):
        a(f"    v_sub_f32 v{eL+2*j}, v{eL+2*j}, v{vM}")
    for j in range(WPH):
        a(f"    v_exp_f32 v{eL+2*j}, v{eL+2*j}")
    a("    s_nop 0")
    a(f"    v_mul_f32 v{vL}, v{eL}, v{eL+1}")
    for j in range(1, WPH):
        a(f"    v_fma_f32 v{vL}, v{eL+2*j}, v{eL+2*j+1}, v{vL}")
    for c in range(4):
        a(f"    v_mul_f32 v{vD+c}, v{e+c}, v{eL}")
    for j in range(1, WPH):
        for c in range(4):
            a(f"    v_fma_f32 v{vD+c}, v{e+4*j+c}, v{eL+2*j}, v{vD+c}")
    a(f"    v_rcp_f32 v{vL}, v{vL}")
    a("    s_nop 0")
    for c in range(4):
        a(f"    v_mul_f32 v{vD+c}, v{vD+c}, v{vL}")
    a(f"    v_cvt_pk_bf16_f32 v{vD+4}, v{vD}, v{vD+1}")
    a(f"    v_cvt_pk_bf16_f32 v{vD+5}, v{vD+2}, v{vD+3}")
    a(f"    s_lshl_b32 s26, s{sHead}, 9")
    a("    s_add_u32 s4, s4, s26")
    a("    s_addc_u32 s5, s5, 0")
    a(f"    v_lshlrev_b32 v{vT}, 3, v{vLane}")
    a(f"    global_store_dwordx2 v{vT}, v[{vD+4}:{vD+5}], s[4:5]")
    a("L_done_stamp:")
    if stamps:
        a("    s_memrealtime s[34:35]")
        a("    s_waitcnt lgkmcnt(0) vmcnt(0)")
        a(f"    v_readfirstlane_b32 s37, v0")
        a("    s_nop 3")
        a(f"    s_lshr_b32 s37, s37, 6")
        a(f"    s_mul_i32 s36, s2, {NW}")
        a(f"    s_add_u32 s36, s36, s37")
        a("    s_lshl_b32 s36, s36, 4")
        a("    s_add_u32 s36, s36, 0x400000")
        a("    v_mov_b32 v60, s30")
        a("    v_mov_b32 v61, s31")
        a("    v_mov_b32 v62, s34")
        a("    v_mov_b32 v63, s35")
        a("    v_mov_b32 v59, s36")
        a("    global_store_dwordx4 v59, v[60:63], s[8:9]")
        a("    s_getreg_b32 s35, hwreg(HW_REG_XCC_ID)")
        a("    s_lshr_b32 s36, s36, 2")
        a("    s_add_u32 s36, s36, 0x400000")
        a("    v_mov_b32 v60, s35")
        a("    v_mov_b32 v59, s36")
        a("    global_store_dword v59, v60, s[8:9]")
    a("L_done:")
    a("    s_endpgm")

    a("L_rare:")
    a(f"    v_max_f32_dpp v{vT}, v{vR}, v{vR} row_ror:4 row_mask:0xf bank_mask:0xf")
    a("    s_nop 1")
    a(f"    v_max_f32_dpp v{vT}, v{vT}, v{vT} row_ror:8 row_mask:0xf bank_mask:0xf")
    a("    s_nop 1")
    for i in range(4):
        a(f"    v_readlane_b32 s{40+i}, v{vT}, {16*i}")
    a("    s_nop 1")
    a(f"    v_max_f32 v{vT}, s40, v{vM}")
    a(f"    v_max_f32 v{vT}, s41, v{vT}")
    a(f"    v_max_f32 v{vT}, s42, v{vT}")
    a(f"    v_max_f32 v{vT}, s43, v{vT}")
    a(f"    v_sub_f32 v{vU}, v{vM}, v{vT}")
    a(f"    v_mul_f32 v{vU}, s{sC}, v{vU}")
    a(f"    v_exp_f32 v{vU}, v{vU}")
    a(f"    v_mov_b32 v{vM}, v{vT}")
    a(f"    v_mul_f32 v{vMs}, s{sC}, v{vT}")
    a(f"    v_mul_f32 v{vL}, v{vL}, v{vU}")
    for r in range(8):
        a(f"    v_mul_f32 v{vD+r}, v{vD+r}, v{vU}")
    a("    s_branch L_back")

    a('.section .rodata,"a"')
    a(".p2align 6")
    a(f".amdhsa_kernel {KNAME}")
    a(f"  .amdhsa_next_free_vgpr {NV}")
    a("  .amdhsa_next_free_sgpr 64")
    a(f"  .amdhsa_accum_offset {(NV + 3) // 4 * 4}")
    a("  .amdhsa_group_segment_fixed_size 0")
    a("  .amdhsa_kernarg_size 48")
    a("  .amdhsa_user_sgpr_count 2")
    a("  .amdhsa_user_sgpr_kernarg_segment_ptr 1")
    a("  .amdhsa_system_sgpr_workgroup_id_x 1")
    a(".end_amdhsa_kernel")
    return "\n".join(o) + "\n"

if __name__ == "__main__":
    out = sys.argv[1]
    kw = eval("dict(" + (sys.argv[2] if len(sys.argv) > 2 else "") + ")")
    open(out, "w").write(gen(**kw))
```

```python
import sys, struct

KNAME = "standalone__softmax_full_bidir__decode_kernel"
HEADER_COMMENTS = """; Kernarg layout for this problem (48 bytes, ptrs only, base s[0:1]):
"""

def gen(N=20, A=8, R=8, NC=3, flags="nt", stamps=False, prio=True, N2=None, F=0, safe=False, st2=False):
    WPH = 4
    G = 64 * WPH
    REGION = 2 << 20
    NT = REGION // 8192
    NW = NC + 1
    C = 0.0625 * 1.4426950408889634
    Cbits = struct.unpack("<I", struct.pack("<f", C))[0]
    SLOT = 16384
    FL = R * SLOT
    FULL0 = FL; FREE0 = FL + 4 * R
    EP0 = FL + 8 * R
    EP0 = (EP0 + 63) // 64 * 64
    ACC0 = EP0; LS0 = ACC0 + NC * 1024; M0_ = LS0 + NC * 16
    LDS = (M0_ + 16 + 63) // 64 * 64
    assert R & (R - 1) == 0
    assert LDS <= 160 * 1024

    o = []
    a = o.append
    def sleep(n):
        a(f"    s_sleep {n}")
        if safe:
            a("    s_sub_u32 s46, s46, 1")
            a("    s_cbranch_scc1 L_done")
    a(HEADER_COMMENTS.rstrip())
    a(f"; @launch grid=({G},1,1) block=({NW*64},1,1) lds={LDS}")
    a('.amdgcn_target "amdgcn-amd-amdhsa--gfx950"')
    a(".text")
    a(f".globl {KNAME}")
    a(".p2align 8")
    a(f".type {KNAME},@function")
    a(f"{KNAME}:")

    vLane = 1; vOff = 2; vAd = 3
    vQ = 4
    vM = 12; vMs = 13; vL = 14; vR = 15
    vS = 16
    vR01 = 20; vR23 = 21; vX = 22; vPP = 23
    vMask = 24
    vD = 28
    vA = 36
    vT = 52; vU = 53; vF = 54; vFa = 55
    vK = 56; vV = 88
    NV = 120
    sK = 12; sV = 16
    sOff = 20; sT = 21; sC = 23; sWave = 3; sHead = 24; sSlot = 25; sWant = 22

    a(f"    s_cmp_ge_u32 s2, {G}")
    a("    s_cbranch_scc1 L_done")
    if stamps:
        a("    s_memrealtime s[30:31]")
    if safe:
        a("    s_mov_b32 s46, 2000000")
    a("    s_load_dwordx4 s[4:7], s[0:1], 0")
    a("    s_load_dwordx2 s[8:9], s[0:1], 16")
    a(f"    v_lshrrev_b32 v{vT}, 6, v0")
    a(f"    v_and_b32 v{vLane}, 63, v0")
    a(f"    v_readfirstlane_b32 s{sWave}, v{vT}")
    a(f"    s_lshr_b32 s{sHead}, s2, 2")
    a(f"    s_lshl_b32 s26, s2, 21")
    a(f"    s_cmp_lg_u32 s{sWave}, 0")
    a("    s_cbranch_scc1 L_consumer")

    if prio:
        a("    s_setprio 3")
    a(f"    v_lshlrev_b32 v{vOff}, 4, v{vLane}")
    a(f"    v_mov_b32 v{vT}, 0")
    a(f"    v_lshlrev_b32 v{vFa}, 2, v{vLane}")
    a(f"    v_add_u32 v{vFa}, {FL}, v{vFa}")
    a(f"    v_cmp_gt_u32 vcc, {2*R}, v{vLane}")
    a("    s_and_saveexec_b64 s[40:41], vcc")
    a(f"    ds_write_b32 v{vFa}, v{vT}")
    a("    s_mov_b64 exec, s[40:41]")
    a(f"    s_mov_b32 s{sOff}, 0")
    a(f"    s_mov_b32 s{sSlot}, 0")
    a(f"    s_mov_b32 s{sT}, 0")
    a("    s_waitcnt lgkmcnt(0)")
    a(f"    s_add_u32 s{sK}, s6, s26")
    a(f"    s_addc_u32 s{sK+1}, s7, 0")
    a(f"    s_mov_b32 s{sK+2}, {REGION}")
    a(f"    s_mov_b32 s{sK+3}, 0x20000")
    a(f"    s_add_u32 s{sV}, s8, s26")
    a(f"    s_addc_u32 s{sV+1}, s9, 0")
    a(f"    s_mov_b32 s{sV+2}, {REGION}")
    a(f"    s_mov_b32 s{sV+3}, 0x20000")
    order = []
    for b in range(0, 8, A):
        order += [("K", i) for i in range(b, b + A)]
        order += [("V", i) for i in range(b, b + A)]
    lag = (15 + N) // 16
    W = {"N": N}
    def setN(n):
        assert (15 + n) % 16 != 15
        W["N"] = n
    setN(N)
    vPa = 8; vPv = 9; vFr = 10
    sThr = 47
    def setup(idx):
        kind, i = order[idx]
        q4 = (i // 4) * 4
        return (0 if kind == "K" else 8192) + q4 * 1024, q4
    def tile_loads(waits, publish, gaps=None):
        gaps = gaps or {}
        cur = None
        def emit_setup(idx):
            nonlocal cur
            m0val, q4 = setup(idx)
            if cur != m0val:
                a(f"    s_add_u32 m0, s{sSlot}, {m0val}")
                if q4 != 0:
                    a(f"    s_add_u32 s27, s{sOff}, {q4*1024}")
                cur = m0val
                return True
            return False
        changed = emit_setup(0)
        for idx, (kind, i) in enumerate(order):
            w = waits(idx)
            if w:
                a(f"    s_waitcnt vmcnt({W['N']-1})")
            elif changed:
                a("    s_nop 0")
            srd = sK if kind == "K" else sV
            q4 = (i // 4) * 4
            imm = (i - q4) * 1024
            so = f"s{sOff}" if q4 == 0 else "s27"
            offs = f" offset:{imm}" if imm else ""
            a(f"    buffer_load_dwordx4 v{vOff}, s[{srd}:{srd+3}], {so} offen{offs} {flags} lds")
            if publish and idx == (15 + W["N"]) % 16:
                publish()
            if idx in gaps:
                gaps[idx]()
            changed = False
            if idx + 1 < 16:
                changed = emit_setup(idx + 1)
    def advance():
        a(f"    s_add_u32 s{sOff}, s{sOff}, 8192")
        a(f"    s_add_u32 s{sSlot}, s{sSlot}, {SLOT}")
        a(f"    s_and_b32 s{sSlot}, s{sSlot}, {R*SLOT-1}")
        a(f"    s_add_u32 s{sT}, s{sT}, 1")
    cnt = [0]
    def w_pro(idx):
        cnt[0] += 1
        return cnt[0] > N
    P = lag
    assert (FULL0 % (4 * R)) == 0 and (FREE0 % (4 * R)) == 0
    if st2:
        a("    s_memrealtime s[48:49]")
    for t in range(P):
        tile_loads(w_pro, None)
        advance()
        if t == 0:
            a("    s_barrier")
    if st2:
        a("    s_memrealtime s[50:51]")
        a("    s_waitcnt lgkmcnt(0)")
    assert cnt[0] >= N
    a(f"    v_mov_b32 v{vPa}, {FULL0 + 4 * ((P - lag) & (R - 1))}")
    a(f"    v_mov_b32 v{vPv}, {P - lag + 1}")
    a(f"    v_mov_b32 v{vFr}, {FREE0 + 4 * ((P + 1) & (R - 1))}")
    a(f"    s_mov_b32 s{sThr}, {P - (R - 1)}")
    def wrapinc(reg, base):
        a(f"    v_add_u32 v{reg}, 4, v{reg}")
        a(f"    v_and_b32 v{reg}, {4 * R - 1}, v{reg}")
        a(f"    v_or_b32 v{reg}, {base}, v{reg}")
    def publish():
        a(f"    ds_write_b32 v{vPa}, v{vPv}")
    def pubnext():
        a(f"    v_add_u32 v{vPv}, 1, v{vPv}")
        wrapinc(vPa, FULL0)
    def freeread():
        a(f"    ds_read_b32 v{vF}, v{vFr}")
        a(f"    v_mov_b32 v{vFa}, v{vFr}")
        wrapinc(vFr, FREE0)
    def freecheck(tag):
        a(f"L_lfree{tag}:")
        a("    s_waitcnt lgkmcnt(0)")
        a(f"    v_cmp_le_i32 vcc, s{sThr}, v{vF}")
        a(f"    s_cbranch_vccnz L_lgo{tag}")
        sleep(1)
        a(f"    ds_read_b32 v{vF}, v{vFa}")
        a(f"    s_branch L_lfree{tag}")
        a(f"L_lgo{tag}:")
        a(f"    s_add_u32 s{sThr}, s{sThr}, 1")
    def gaps():
        ipub = (15 + W["N"]) % 16
        g_pub = ipub + 1
        fs = [x for x in range(15) if x not in (ipub, g_pub)]
        return {g_pub: pubnext, fs[6]: freeread}
    a(f"    v_mov_b32 v{vF}, 0x7fffffff")
    a("L_lloop:")
    freecheck("s")
    tile_loads(lambda idx: True, publish, gaps())
    advance()
    a(f"    s_cmp_lt_u32 s{sT}, {NT - F}")
    a("    s_cbranch_scc1 L_lloop")
    lagF = lag
    if F > 0:
        setN(N2 or N)
        lagF = (15 + W["N"]) // 16
        assert lagF >= lag and F > lagF - lag
        for x in range(lagF - lag):
            freecheck(f"x{x}")
            g = gaps()
            g = {k: v for k, v in g.items() if v is freeread}
            tile_loads(lambda idx: True, None, g)
            advance()
        a("L_ploop:")
        freecheck("p")
        tile_loads(lambda idx: True, publish, gaps())
        advance()
        a(f"    s_cmp_lt_u32 s{sT}, {NT}")
        a("    s_cbranch_scc1 L_ploop")
    lag = lagF
    for k in range(lag):
        a(f"    s_waitcnt vmcnt({16 * (lag - 1 - k)})")
        publish()
        pubnext()
    a("    s_waitcnt lgkmcnt(0)")
    if stamps:
        a("    s_load_dwordx2 s[8:9], s[0:1], 40")
        if st2:
            a("    s_waitcnt lgkmcnt(0)")
            a("    s_lshl_b32 s36, s2, 5")
            a("    s_add_u32 s36, s36, 0x600000")
            a("    v_mov_b32 v60, s30")
            a("    v_mov_b32 v61, s31")
            a("    v_mov_b32 v62, s48")
            a("    v_mov_b32 v63, s49")
            a("    v_mov_b32 v59, s36")
            a("    global_store_dwordx4 v59, v[60:63], s[8:9]")
            a("    v_mov_b32 v64, s50")
            a("    v_mov_b32 v65, s51")
            a("    global_store_dwordx2 v59, v[64:65], s[8:9] offset:16")
        a("    s_branch L_done_stamp")
    a("    s_endpgm")

    a("L_consumer:")
    a("    s_load_dwordx4 s[52:55], s[0:1], 24")
    a("    s_load_dwordx2 s[56:57], s[0:1], 40")
    a(f"    v_lshrrev_b32 v{vU}, 4, v{vLane}")
    a(f"    v_and_b32 v{vT}, 15, v{vLane}")
    a(f"    v_lshlrev_b32 v{vOff}, 9, v{vU}")
    a(f"    v_lshl_add_u32 v{vOff}, v{vT}, 4, v{vOff}")
    a(f"    v_lshlrev_b32 v{vX}, 4, v{vT}")
    a(f"    s_lshl_b32 s27, s{sHead}, 9")
    a(f"    s_mov_b32 s{sC}, {Cbits:#x}")
    a("    s_waitcnt lgkmcnt(0)")
    a("    s_add_u32 s4, s4, s27")
    a("    s_addc_u32 s5, s5, 0")
    a(f"    global_load_dwordx4 v[{vQ}:{vQ+3}], v{vX}, s[4:5]")
    a(f"    global_load_dwordx4 v[{vQ+4}:{vQ+7}], v{vX}, s[4:5] offset:256")
    a(f"    v_and_b32 v{vU}, 1, v{vT}")
    a(f"    v_lshrrev_b32 v{vT}, 1, v{vT}")
    a(f"    v_mov_b32 v{vX}, 0xffff")
    a(f"    v_mov_b32 v{vR}, 0xffff0000")
    a(f"    v_cmp_eq_u32 vcc, 1, v{vU}")
    a("    s_nop 1")
    a(f"    v_cndmask_b32 v{vX}, v{vX}, v{vR}, vcc")
    for r in range(4):
        a(f"    v_cmp_eq_u32 vcc, {r}, v{vT}")
        a("    s_nop 1")
        a(f"    v_cndmask_b32 v{vMask+r}, 0, v{vX}, vcc")
    a(f"    v_mov_b32 v{vM}, 0xff800000")
    a(f"    v_mov_b32 v{vMs}, 0xff800000")
    a(f"    v_mov_b32 v{vL}, 0")
    for r in range(8):
        a(f"    v_mov_b32 v{vD+r}, 0")
    a(f"    s_sub_u32 s{sT}, s{sWave}, 1")
    a("    s_barrier")
    a("    s_waitcnt vmcnt(0)")
    LANE_OF_G = [0, 8, 4, 12]
    a("L_cloop:")
    a(f"    s_and_b32 s{sSlot}, s{sT}, {R-1}")
    a(f"    s_lshl_b32 s28, s{sSlot}, 2")
    a(f"    s_add_u32 s28, s28, {FULL0}")
    a(f"    v_mov_b32 v{vFa}, s28")
    a(f"    s_add_u32 s{sWant}, s{sT}, 1")
    a(f"    s_lshl_b32 s29, s{sSlot}, 14")
    a(f"    v_add_u32 v{vAd}, s29, v{vOff}")
    a("L_cpoll:")
    a(f"    ds_read_b32 v{vF}, v{vFa}")
    a("    s_waitcnt lgkmcnt(0)")
    a(f"    v_cmp_eq_u32 vcc, s{sWant}, v{vF}")
    a("    s_cbranch_vccnz L_cgo")
    sleep(1)
    a("    s_branch L_cpoll")
    a("L_cgo:")
    for g in range(4):
        for h in range(2):
            r = vK + (g * 2 + h) * 4
            a(f"    ds_read_b128 v[{r}:{r+3}], v{vAd} offset:{g*2048 + h*256}")
    for g in range(4):
        for h in range(2):
            r = vV + (g * 2 + h) * 4
            a(f"    ds_read_b128 v[{r}:{r+3}], v{vAd} offset:{8192 + g*2048 + h*256}")
    a("    s_waitcnt lgkmcnt(8)")
    for k in range(8):
        h = k >> 2; r = k & 3
        for g in range(4):
            src2 = "0" if k == 0 else f"v{vS+g}"
            a(f"    v_dot2_f32_bf16 v{vS+g}, v{vK+(g*2+h)*4+r}, v{vQ+h*4+r}, {src2}")
    a("    s_waitcnt lgkmcnt(0)")
    a(f"    v_mov_b32 v{vT}, s{sWant}")
    a(f"    ds_write_b32 v{vFa}, v{vT} offset:{FREE0 - FULL0}")
    a("    s_nop 0")
    a(f"    v_add_f32_dpp v{vR01}, v{vS+0}, v{vS+0} row_ror:8 row_mask:0xf bank_mask:0x3")
    a(f"    v_add_f32_dpp v{vR23}, v{vS+2}, v{vS+2} row_ror:8 row_mask:0xf bank_mask:0x3")
    a(f"    v_add_f32_dpp v{vR01}, v{vS+1}, v{vS+1} row_ror:8 row_mask:0xf bank_mask:0xc")
    a(f"    v_add_f32_dpp v{vR23}, v{vS+3}, v{vS+3} row_ror:8 row_mask:0xf bank_mask:0xc")
    a("    s_nop 0")
    a(f"    v_add_f32_dpp v{vR}, v{vR01}, v{vR01} row_shl:4 row_mask:0xf bank_mask:0x5")
    a(f"    v_add_f32_dpp v{vR}, v{vR23}, v{vR23} row_shr:4 row_mask:0xf bank_mask:0xa")
    a("    s_nop 1")
    a(f"    v_add_f32_dpp v{vR}, v{vR}, v{vR} quad_perm:[2,3,0,1] row_mask:0xf bank_mask:0xf")
    a("    s_nop 1")
    a(f"    v_add_f32_dpp v{vR}, v{vR}, v{vR} quad_perm:[1,0,3,2] row_mask:0xf bank_mask:0xf")
    a(f"    v_cmp_gt_f32 vcc, v{vR}, v{vM}")
    a("    s_cbranch_vccnz L_rare")
    a("L_back:")
    a(f"    v_fma_f32 v{vX}, v{vR}, s{sC}, -v{vMs}")
    a(f"    v_exp_f32 v{vX}, v{vX}")
    a("    s_nop 0")
    a(f"    v_cvt_pk_bf16_f32 v{vPP}, v{vX}, v{vX}")
    a(f"    v_add_f32 v{vL}, v{vL}, v{vX}")
    a("    s_nop 0")
    for g in range(4):
        for r in range(4):
            a(f"    v_and_b32_dpp v{vA+g*4+r}, v{vPP}, v{vMask+r} row_newbcast:{LANE_OF_G[g]} row_mask:0xf bank_mask:0xf")
    a("    s_nop 1")
    for g in range(4):
        for h in range(2):
            d = vD + 4 * h
            b = vV + (g * 2 + h) * 4
            a(f"    v_mfma_f32_16x16x32_bf16 v[{d}:{d+3}], v[{vA+g*4}:{vA+g*4+3}], v[{b}:{b+3}], v[{d}:{d+3}]")
    a(f"    s_add_u32 s{sT}, s{sT}, {NC}")
    a(f"    s_cmp_lt_u32 s{sT}, {NT}")
    a("    s_cbranch_scc1 L_cloop")

    if stamps:
        a("    s_memrealtime s[32:33]")
    a("    s_mov_b64 s[4:5], s[52:53]")
    a("    s_mov_b64 s[6:7], s[54:55]")
    a("    s_mov_b64 s[8:9], s[56:57]")
    a(f"    s_sub_u32 s{sWave}, s{sWave}, 1")
    a(f"    v_add_f32_dpp v{vT}, v{vL}, v{vL} row_ror:4 row_mask:0xf bank_mask:0xf")
    a("    s_nop 1")
    a(f"    v_add_f32_dpp v{vT}, v{vT}, v{vT} row_ror:8 row_mask:0xf bank_mask:0xf")
    a(f"    v_and_b32 v{vU}, 15, v{vLane}")
    a(f"    v_lshrrev_b32 v{vX}, 4, v{vLane}")
    a(f"    v_lshlrev_b32 v{vU}, 5, v{vU}")
    a(f"    v_lshl_add_u32 v{vU}, v{vX}, 4, v{vU}")
    a(f"    s_lshl_b32 s26, s{sWave}, 10")
    a(f"    s_add_u32 s26, s26, {ACC0}")
    a(f"    v_add_u32 v{vU}, s26, v{vU}")
    a(f"    s_lshl_b32 s26, s{sWave}, 4")
    a(f"    s_add_u32 s26, s26, {LS0}")
    a(f"    v_lshl_add_u32 v{vX}, v{vX}, 2, s26")
    a(f"    s_lshl_b32 s26, s{sWave}, 2")
    a(f"    s_add_u32 s26, s26, {M0_}")
    a(f"    v_mov_b32 v{vR}, s26")
    a(f"    ds_write_b32 v{vX}, v{vT}")
    a(f"    ds_write_b32 v{vR}, v{vMs}")
    a("    s_nop 4")
    a("    s_mov_b32 exec_hi, 0")
    a(f"    ds_write_b128 v{vU}, v[{vD}:{vD+3}]")
    a(f"    ds_write_b128 v{vU}, v[{vD+4}:{vD+7}] offset:512")
    a("    s_mov_b32 exec_hi, -1")
    a("    s_waitcnt lgkmcnt(0)")
    a("    s_barrier")
    a(f"    s_cmp_lg_u32 s{sWave}, 0")
    a("    s_cbranch_scc1 L_done_stamp")
    e = vK
    a(f"    v_lshlrev_b32 v{vU}, 4, v{vLane}")
    a(f"    v_add_u32 v{vT}, {ACC0}, v{vU}")
    a(f"    v_mov_b32 v{vX}, {LS0}")
    for w in range(NC):
        a(f"    ds_read_b128 v[{e+4*w}:{e+4*w+3}], v{vT} offset:{w*1024}")
    eL = e + 4 * NC
    for w in range(NC):
        a(f"    ds_read_b128 v[{eL+4*w}:{eL+4*w+3}], v{vX} offset:{w*16}")
    eM = eL + 4 * NC
    a(f"    ds_read_b128 v[{eM}:{eM+3}], v{vX} offset:{M0_ - LS0}")
    a("    s_waitcnt lgkmcnt(0)")
    a(f"    v_max_f32 v{vM}, v{eM}, v{eM+1}")
    for w in range(2, NC):
        a(f"    v_max_f32 v{vM}, v{vM}, v{eM+w}")
    for w in range(NC):
        a(f"    v_sub_f32 v{eM+w}, v{eM+w}, v{vM}")
    for w in range(NC):
        a(f"    v_exp_f32 v{eM+w}, v{eM+w}")
    for w in range(NC):
        a(f"    v_add_f32 v{eL+4*w}, v{eL+4*w}, v{eL+4*w+1}")
        a(f"    v_add_f32 v{eL+4*w+2}, v{eL+4*w+2}, v{eL+4*w+3}")
    for w in range(NC):
        a(f"    v_add_f32 v{eL+4*w}, v{eL+4*w}, v{eL+4*w+2}")
    a(f"    v_mul_f32 v{vL}, v{eL}, v{eM}")
    for w in range(1, NC):
        a(f"    v_fma_f32 v{vL}, v{eL+4*w}, v{eM+w}, v{vL}")
    for c in range(4):
        a(f"    v_mul_f32 v{vD+c}, v{e+c}, v{eM}")
    for w in range(1, NC):
        for c in range(4):
            a(f"    v_fma_f32 v{vD+c}, v{e+4*w+c}, v{eM+w}, v{vD+c}")
    a("    s_lshl_b32 s26, s2, 11")
    a("    s_add_u32 s10, s8, s26")
    a("    s_addc_u32 s11, s9, 0")
    a(f"    v_mov_b32 v{vD+4}, v{vM}")
    a(f"    v_mov_b32 v{vD+5}, v{vL}")
    a(f"    global_store_dwordx4 v{vU}, v[{vD}:{vD+3}], s[10:11] sc1")
    a(f"    v_mov_b32 v{vX}, 0")
    a("    s_mov_b64 exec, 1")
    a(f"    global_store_dwordx2 v{vX}, v[{vD+4}:{vD+5}], s[10:11] offset:1024 sc1")
    a("    s_waitcnt vmcnt(0)")
    a(f"    s_lshl_b32 s26, s{sHead}, 2")
    a(f"    v_mov_b32 v{vT}, s26")
    a(f"    v_mov_b32 v{vR}, 1")
    a(f"    global_atomic_add v{vR01}, v{vT}, v{vR}, s[6:7] sc0")
    a("    s_waitcnt vmcnt(0)")
    a(f"    v_readfirstlane_b32 s26, v{vR01}")
    a("    s_mov_b64 exec, -1")
    a(f"    s_cmp_lg_u32 s26, {WPH-1}")
    a("    s_cbranch_scc1 L_done_stamp")
    eL = e + 4 * WPH
    a(f"    s_lshl_b32 s26, s{sHead}, {11 + WPH.bit_length() - 1}")
    a("    s_add_u32 s10, s8, s26")
    a("    s_addc_u32 s11, s9, 0")
    for j in range(WPH):
        a(f"    v_add_u32 v{vT}, {j*2048}, v{vU}")
        a(f"    global_load_dwordx4 v[{e+4*j}:{e+4*j+3}], v{vT}, s[10:11] sc1")
        a(f"    v_mov_b32 v{vT}, {j*2048 + 1024}")
        a(f"    global_load_dwordx2 v[{eL+2*j}:{eL+2*j+1}], v{vT}, s[10:11] sc1")
    a("    s_waitcnt vmcnt(0)")
    a(f"    v_max_f32 v{vM}, v{eL}, v{eL+2}")
    for j in range(2, WPH):
        a(f"    v_max_f32 v{vM}, v{vM}, v{eL+2*j}")
    for j in range(WPH):
        a(f"    v_sub_f32 v{eL+2*j}, v{eL+2*j}, v{vM}")
    for j in range(WPH):
        a(f"    v_exp_f32 v{eL+2*j}, v{eL+2*j}")
    a("    s_nop 0")
    a(f"    v_mul_f32 v{vL}, v{eL}, v{eL+1}")
    for j in range(1, WPH):
        a(f"    v_fma_f32 v{vL}, v{eL+2*j}, v{eL+2*j+1}, v{vL}")
    for c in range(4):
        a(f"    v_mul_f32 v{vD+c}, v{e+c}, v{eL}")
    for j in range(1, WPH):
        for c in range(4):
            a(f"    v_fma_f32 v{vD+c}, v{e+4*j+c}, v{eL+2*j}, v{vD+c}")
    a(f"    v_rcp_f32 v{vL}, v{vL}")
    a("    s_nop 0")
    for c in range(4):
        a(f"    v_mul_f32 v{vD+c}, v{vD+c}, v{vL}")
    a(f"    v_cvt_pk_bf16_f32 v{vD+4}, v{vD}, v{vD+1}")
    a(f"    v_cvt_pk_bf16_f32 v{vD+5}, v{vD+2}, v{vD+3}")
    a(f"    s_lshl_b32 s26, s{sHead}, 9")
    a("    s_add_u32 s4, s4, s26")
    a("    s_addc_u32 s5, s5, 0")
    a(f"    v_lshlrev_b32 v{vT}, 3, v{vLane}")
    a(f"    global_store_dwordx2 v{vT}, v[{vD+4}:{vD+5}], s[4:5]")
    a("L_done_stamp:")
    if stamps:
        a("    s_memrealtime s[34:35]")
        a("    s_waitcnt lgkmcnt(0) vmcnt(0)")
        a(f"    v_readfirstlane_b32 s37, v0")
        a("    s_nop 3")
        a(f"    s_lshr_b32 s37, s37, 6")
        a(f"    s_mul_i32 s36, s2, {NW}")
        a(f"    s_add_u32 s36, s36, s37")
        a("    s_lshl_b32 s36, s36, 4")
        a("    s_add_u32 s36, s36, 0x400000")
        a("    v_mov_b32 v60, s30")
        a("    v_mov_b32 v61, s31")
        a("    v_mov_b32 v62, s34")
        a("    v_mov_b32 v63, s35")
        a("    v_mov_b32 v59, s36")
        a("    global_store_dwordx4 v59, v[60:63], s[8:9]")
        a("    s_getreg_b32 s35, hwreg(HW_REG_XCC_ID)")
        a("    s_lshr_b32 s36, s36, 2")
        a("    s_add_u32 s36, s36, 0x400000")
        a("    v_mov_b32 v60, s35")
        a("    v_mov_b32 v59, s36")
        a("    global_store_dword v59, v60, s[8:9]")
    a("L_done:")
    a("    s_endpgm")

    a("L_rare:")
    a(f"    v_max_f32_dpp v{vT}, v{vR}, v{vR} row_ror:4 row_mask:0xf bank_mask:0xf")
    a("    s_nop 1")
    a(f"    v_max_f32_dpp v{vT}, v{vT}, v{vT} row_ror:8 row_mask:0xf bank_mask:0xf")
    a("    s_nop 1")
    for i in range(4):
        a(f"    v_readlane_b32 s{40+i}, v{vT}, {16*i}")
    a("    s_nop 1")
    a(f"    v_max_f32 v{vT}, s40, v{vM}")
    a(f"    v_max_f32 v{vT}, s41, v{vT}")
    a(f"    v_max_f32 v{vT}, s42, v{vT}")
    a(f"    v_max_f32 v{vT}, s43, v{vT}")
    a(f"    v_sub_f32 v{vU}, v{vM}, v{vT}")
    a(f"    v_mul_f32 v{vU}, s{sC}, v{vU}")
    a(f"    v_exp_f32 v{vU}, v{vU}")
    a(f"    v_mov_b32 v{vM}, v{vT}")
    a(f"    v_mul_f32 v{vMs}, s{sC}, v{vT}")
    a(f"    v_mul_f32 v{vL}, v{vL}, v{vU}")
    for r in range(8):
        a(f"    v_mul_f32 v{vD+r}, v{vD+r}, v{vU}")
    a("    s_branch L_back")

    a('.section .rodata,"a"')
    a(".p2align 6")
    a(f".amdhsa_kernel {KNAME}")
    a(f"  .amdhsa_next_free_vgpr {NV}")
    a("  .amdhsa_next_free_sgpr 64")
    a(f"  .amdhsa_accum_offset {(NV + 3) // 4 * 4}")
    a("  .amdhsa_group_segment_fixed_size 0")
    a("  .amdhsa_kernarg_size 48")
    a("  .amdhsa_user_sgpr_count 2")
    a("  .amdhsa_user_sgpr_kernarg_segment_ptr 1")
    a("  .amdhsa_system_sgpr_workgroup_id_x 1")
    a(".end_amdhsa_kernel")
    return "\n".join(o) + "\n"

if __name__ == "__main__":
    out = sys.argv[1]
    kw = eval("dict(" + (sys.argv[2] if len(sys.argv) > 2 else "") + ")")
    open(out, "w").write(gen(**kw))
```

```python
import sys, struct

KNAME = "standalone__softmax_full_bidir__decode_kernel"
HEADER_COMMENTS = """; Kernarg layout for this problem (48 bytes, ptrs only, base s[0:1]):
"""

def gen(N=20, A=8, R=8, NC=3, flags="nt", stamps=False, prio=True, N2=None, F=0, safe=False, st2=False, touch=False):
    WPH = 4
    G = 64 * WPH
    REGION = 2 << 20
    NT = REGION // 8192
    NW = NC + 1
    C = 0.0625 * 1.4426950408889634
    Cbits = struct.unpack("<I", struct.pack("<f", C))[0]
    SLOT = 16384
    FL = R * SLOT
    FULL0 = FL; FREE0 = FL + 4 * R
    EP0 = FL + 8 * R
    EP0 = (EP0 + 63) // 64 * 64
    ACC0 = EP0; LS0 = ACC0 + NC * 1024; M0_ = LS0 + NC * 16
    LDS = (M0_ + 16 + 63) // 64 * 64
    assert R & (R - 1) == 0
    assert LDS <= 160 * 1024

    o = []
    a = o.append
    def sleep(n):
        a(f"    s_sleep {n}")
        if safe:
            a("    s_sub_u32 s46, s46, 1")
            a("    s_cbranch_scc1 L_done")
    a(HEADER_COMMENTS.rstrip())
    a(f"; @launch grid=({G},1,1) block=({NW*64},1,1) lds={LDS}")
    a('.amdgcn_target "amdgcn-amd-amdhsa--gfx950"')
    a(".text")
    a(f".globl {KNAME}")
    a(".p2align 8")
    a(f".type {KNAME},@function")
    a(f"{KNAME}:")

    vLane = 1; vOff = 2; vAd = 3
    vQ = 4
    vM = 12; vMs = 13; vL = 14; vR = 15
    vS = 16
    vR01 = 20; vR23 = 21; vX = 22; vPP = 23
    vMask = 24
    vD = 28
    vA = 36
    vT = 52; vU = 53; vF = 54; vFa = 55
    vK = 56; vV = 88
    NV = 124 if touch else 120
    sK = 12; sV = 16
    sOff = 20; sT = 21; sC = 23; sWave = 3; sHead = 24; sSlot = 25; sWant = 22

    a(f"    s_cmp_ge_u32 s2, {G}")
    a("    s_cbranch_scc1 L_done")
    if stamps:
        a("    s_memrealtime s[30:31]")
    if safe:
        a("    s_mov_b32 s46, 2000000")
    a("    s_load_dwordx4 s[4:7], s[0:1], 0")
    a("    s_load_dwordx2 s[8:9], s[0:1], 16")
    a(f"    v_lshrrev_b32 v{vT}, 6, v0")
    a(f"    v_and_b32 v{vLane}, 63, v0")
    a(f"    v_readfirstlane_b32 s{sWave}, v{vT}")
    a(f"    s_lshr_b32 s{sHead}, s2, 2")
    a(f"    s_lshl_b32 s26, s2, 21")
    a(f"    s_cmp_lg_u32 s{sWave}, 0")
    a("    s_cbranch_scc1 L_consumer")

    if prio:
        a("    s_setprio 3")
    a(f"    v_lshlrev_b32 v{vOff}, 4, v{vLane}")
    a(f"    v_mov_b32 v{vT}, 0")
    a(f"    v_lshlrev_b32 v{vFa}, 2, v{vLane}")
    a(f"    v_add_u32 v{vFa}, {FL}, v{vFa}")
    a(f"    v_cmp_gt_u32 vcc, {2*R}, v{vLane}")
    a("    s_and_saveexec_b64 s[40:41], vcc")
    a(f"    ds_write_b32 v{vFa}, v{vT}")
    a("    s_mov_b64 exec, s[40:41]")
    a(f"    s_mov_b32 s{sOff}, 0")
    a(f"    s_mov_b32 s{sSlot}, 0")
    a(f"    s_mov_b32 s{sT}, 0")
    a("    s_waitcnt lgkmcnt(0)")
    a(f"    s_add_u32 s{sK}, s6, s26")
    a(f"    s_addc_u32 s{sK+1}, s7, 0")
    a(f"    s_mov_b32 s{sK+2}, {REGION}")
    a(f"    s_mov_b32 s{sK+3}, 0x20000")
    a(f"    s_add_u32 s{sV}, s8, s26")
    a(f"    s_addc_u32 s{sV+1}, s9, 0")
    a(f"    s_mov_b32 s{sV+2}, {REGION}")
    a(f"    s_mov_b32 s{sV+3}, 0x20000")
    order = []
    for b in range(0, 8, A):
        order += [("K", i) for i in range(b, b + A)]
        order += [("V", i) for i in range(b, b + A)]
    lag = (15 + N) // 16
    W = {"N": N}
    def setN(n):
        assert (15 + n) % 16 != 15
        W["N"] = n
    setN(N)
    vPa = 8; vPv = 9; vFr = 10
    sThr = 47
    def setup(idx):
        kind, i = order[idx]
        q4 = (i // 4) * 4
        return (0 if kind == "K" else 8192) + q4 * 1024, q4
    def tile_loads(waits, publish, gaps=None):
        gaps = gaps or {}
        cur = None
        def emit_setup(idx):
            nonlocal cur
            m0val, q4 = setup(idx)
            if cur != m0val:
                a(f"    s_add_u32 m0, s{sSlot}, {m0val}")
                if q4 != 0:
                    a(f"    s_add_u32 s27, s{sOff}, {q4*1024}")
                cur = m0val
                return True
            return False
        changed = emit_setup(0)
        for idx, (kind, i) in enumerate(order):
            w = waits(idx)
            if w:
                a(f"    s_waitcnt vmcnt({W['N']-1})")
            elif changed:
                a("    s_nop 0")
            srd = sK if kind == "K" else sV
            q4 = (i // 4) * 4
            imm = (i - q4) * 1024
            so = f"s{sOff}" if q4 == 0 else "s27"
            offs = f" offset:{imm}" if imm else ""
            a(f"    buffer_load_dwordx4 v{vOff}, s[{srd}:{srd+3}], {so} offen{offs} {flags} lds")
            if publish and idx == (15 + W["N"]) % 16:
                publish()
            if idx in gaps:
                gaps[idx]()
            changed = False
            if idx + 1 < 16:
                changed = emit_setup(idx + 1)
    def advance():
        a(f"    s_add_u32 s{sOff}, s{sOff}, 8192")
        a(f"    s_add_u32 s{sSlot}, s{sSlot}, {SLOT}")
        a(f"    s_and_b32 s{sSlot}, s{sSlot}, {R*SLOT-1}")
        a(f"    s_add_u32 s{sT}, s{sT}, 1")
    cnt = [0]
    def w_pro(idx):
        cnt[0] += 1
        return cnt[0] > N
    P = lag
    assert (FULL0 % (4 * R)) == 0 and (FREE0 % (4 * R)) == 0
    if st2:
        a("    s_memrealtime s[48:49]")
    for t in range(P):
        tile_loads(w_pro, None)
        advance()
        if t == 0:
            a("    s_barrier")
    if st2:
        a("    s_memrealtime s[50:51]")
        a("    s_waitcnt lgkmcnt(0)")
    assert cnt[0] >= N
    a(f"    v_mov_b32 v{vPa}, {FULL0 + 4 * ((P - lag) & (R - 1))}")
    a(f"    v_mov_b32 v{vPv}, {P - lag + 1}")
    a(f"    v_mov_b32 v{vFr}, {FREE0 + 4 * ((P + 1) & (R - 1))}")
    a(f"    s_mov_b32 s{sThr}, {P - (R - 1)}")
    def wrapinc(reg, base):
        a(f"    v_add_u32 v{reg}, 4, v{reg}")
        a(f"    v_and_b32 v{reg}, {4 * R - 1}, v{reg}")
        a(f"    v_or_b32 v{reg}, {base}, v{reg}")
    def publish():
        a(f"    ds_write_b32 v{vPa}, v{vPv}")
    def pubnext():
        a(f"    v_add_u32 v{vPv}, 1, v{vPv}")
        wrapinc(vPa, FULL0)
    def freeread():
        a(f"    ds_read_b32 v{vF}, v{vFr}")
        a(f"    v_mov_b32 v{vFa}, v{vFr}")
        wrapinc(vFr, FREE0)
    def freecheck(tag):
        a(f"L_lfree{tag}:")
        a("    s_waitcnt lgkmcnt(0)")
        a(f"    v_cmp_le_i32 vcc, s{sThr}, v{vF}")
        a(f"    s_cbranch_vccnz L_lgo{tag}")
        sleep(1)
        a(f"    ds_read_b32 v{vF}, v{vFa}")
        a(f"    s_branch L_lfree{tag}")
        a(f"L_lgo{tag}:")
        a(f"    s_add_u32 s{sThr}, s{sThr}, 1")
    def gaps():
        ipub = (15 + W["N"]) % 16
        g_pub = ipub + 1
        fs = [x for x in range(15) if x not in (ipub, g_pub)]
        return {g_pub: pubnext, fs[6]: freeread}
    a(f"    v_mov_b32 v{vF}, 0x7fffffff")
    a("L_lloop:")
    freecheck("s")
    tile_loads(lambda idx: True, publish, gaps())
    advance()
    a(f"    s_cmp_lt_u32 s{sT}, {NT - F}")
    a("    s_cbranch_scc1 L_lloop")
    lagF = lag
    if F > 0:
        setN(N2 or N)
        lagF = (15 + W["N"]) // 16
        assert lagF >= lag and F > lagF - lag
        for x in range(lagF - lag):
            freecheck(f"x{x}")
            g = gaps()
            g = {k: v for k, v in g.items() if v is freeread}
            tile_loads(lambda idx: True, None, g)
            advance()
        a("L_ploop:")
        freecheck("p")
        tile_loads(lambda idx: True, publish, gaps())
        advance()
        a(f"    s_cmp_lt_u32 s{sT}, {NT}")
        a("    s_cbranch_scc1 L_ploop")
    lag = lagF
    for k in range(lag):
        a(f"    s_waitcnt vmcnt({16 * (lag - 1 - k)})")
        publish()
        pubnext()
    a("    s_waitcnt lgkmcnt(0)")
    if stamps:
        a("    s_load_dwordx2 s[8:9], s[0:1], 40")
        if st2:
            a("    s_waitcnt lgkmcnt(0)")
            a("    s_lshl_b32 s36, s2, 5")
            a("    s_add_u32 s36, s36, 0x600000")
            a("    v_mov_b32 v60, s30")
            a("    v_mov_b32 v61, s31")
            a("    v_mov_b32 v62, s48")
            a("    v_mov_b32 v63, s49")
            a("    v_mov_b32 v59, s36")
            a("    global_store_dwordx4 v59, v[60:63], s[8:9]")
            a("    v_mov_b32 v64, s50")
            a("    v_mov_b32 v65, s51")
            a("    global_store_dwordx2 v59, v[64:65], s[8:9] offset:16")
        a("    s_branch L_done_stamp")
    a("    s_endpgm")

    a("L_consumer:")
    a("    s_load_dwordx4 s[52:55], s[0:1], 24")
    a("    s_load_dwordx2 s[56:57], s[0:1], 40")
    a(f"    v_lshrrev_b32 v{vU}, 4, v{vLane}")
    a(f"    v_and_b32 v{vT}, 15, v{vLane}")
    a(f"    v_lshlrev_b32 v{vOff}, 9, v{vU}")
    a(f"    v_lshl_add_u32 v{vOff}, v{vT}, 4, v{vOff}")
    a(f"    v_lshlrev_b32 v{vX}, 4, v{vT}")
    a(f"    s_lshl_b32 s27, s{sHead}, 9")
    a(f"    s_mov_b32 s{sC}, {Cbits:#x}")
    a("    s_waitcnt lgkmcnt(0)")
    a("    s_add_u32 s4, s4, s27")
    a("    s_addc_u32 s5, s5, 0")
    a(f"    global_load_dwordx4 v[{vQ}:{vQ+3}], v{vX}, s[4:5]")
    a(f"    global_load_dwordx4 v[{vQ+4}:{vQ+7}], v{vX}, s[4:5] offset:256")
    if touch:
        a(f"    v_mov_b32 v123, 0")
        a(f"    global_load_dword v120, v123, s[52:53]")
        a(f"    global_load_dword v121, v123, s[54:55]")
        a(f"    global_load_dword v122, v123, s[56:57]")
    a(f"    v_and_b32 v{vU}, 1, v{vT}")
    a(f"    v_lshrrev_b32 v{vT}, 1, v{vT}")
    a(f"    v_mov_b32 v{vX}, 0xffff")
    a(f"    v_mov_b32 v{vR}, 0xffff0000")
    a(f"    v_cmp_eq_u32 vcc, 1, v{vU}")
    a("    s_nop 1")
    a(f"    v_cndmask_b32 v{vX}, v{vX}, v{vR}, vcc")
    for r in range(4):
        a(f"    v_cmp_eq_u32 vcc, {r}, v{vT}")
        a("    s_nop 1")
        a(f"    v_cndmask_b32 v{vMask+r}, 0, v{vX}, vcc")
    a(f"    v_mov_b32 v{vM}, 0xff800000")
    a(f"    v_mov_b32 v{vMs}, 0xff800000")
    a(f"    v_mov_b32 v{vL}, 0")
    for r in range(8):
        a(f"    v_mov_b32 v{vD+r}, 0")
    a(f"    s_sub_u32 s{sT}, s{sWave}, 1")
    a("    s_barrier")
    a(f"    s_waitcnt vmcnt({3 if touch else 0})")
    LANE_OF_G = [0, 8, 4, 12]
    a("L_cloop:")
    a(f"    s_and_b32 s{sSlot}, s{sT}, {R-1}")
    a(f"    s_lshl_b32 s28, s{sSlot}, 2")
    a(f"    s_add_u32 s28, s28, {FULL0}")
    a(f"    v_mov_b32 v{vFa}, s28")
    a(f"    s_add_u32 s{sWant}, s{sT}, 1")
    a(f"    s_lshl_b32 s29, s{sSlot}, 14")
    a(f"    v_add_u32 v{vAd}, s29, v{vOff}")
    a("L_cpoll:")
    a(f"    ds_read_b32 v{vF}, v{vFa}")
    a("    s_waitcnt lgkmcnt(0)")
    a(f"    v_cmp_eq_u32 vcc, s{sWant}, v{vF}")
    a("    s_cbranch_vccnz L_cgo")
    sleep(1)
    a("    s_branch L_cpoll")
    a("L_cgo:")
    for g in range(4):
        for h in range(2):
            r = vK + (g * 2 + h) * 4
            a(f"    ds_read_b128 v[{r}:{r+3}], v{vAd} offset:{g*2048 + h*256}")
    for g in range(4):
        for h in range(2):
            r = vV + (g * 2 + h) * 4
            a(f"    ds_read_b128 v[{r}:{r+3}], v{vAd} offset:{8192 + g*2048 + h*256}")
    a("    s_waitcnt lgkmcnt(8)")
    for k in range(8):
        h = k >> 2; r = k & 3
        for g in range(4):
            src2 = "0" if k == 0 else f"v{vS+g}"
            a(f"    v_dot2_f32_bf16 v{vS+g}, v{vK+(g*2+h)*4+r}, v{vQ+h*4+r}, {src2}")
    a("    s_waitcnt lgkmcnt(0)")
    a(f"    v_mov_b32 v{vT}, s{sWant}")
    a(f"    ds_write_b32 v{vFa}, v{vT} offset:{FREE0 - FULL0}")
    a("    s_nop 0")
    a(f"    v_add_f32_dpp v{vR01}, v{vS+0}, v{vS+0} row_ror:8 row_mask:0xf bank_mask:0x3")
    a(f"    v_add_f32_dpp v{vR23}, v{vS+2}, v{vS+2} row_ror:8 row_mask:0xf bank_mask:0x3")
    a(f"    v_add_f32_dpp v{vR01}, v{vS+1}, v{vS+1} row_ror:8 row_mask:0xf bank_mask:0xc")
    a(f"    v_add_f32_dpp v{vR23}, v{vS+3}, v{vS+3} row_ror:8 row_mask:0xf bank_mask:0xc")
    a("    s_nop 0")
    a(f"    v_add_f32_dpp v{vR}, v{vR01}, v{vR01} row_shl:4 row_mask:0xf bank_mask:0x5")
    a(f"    v_add_f32_dpp v{vR}, v{vR23}, v{vR23} row_shr:4 row_mask:0xf bank_mask:0xa")
    a("    s_nop 1")
    a(f"    v_add_f32_dpp v{vR}, v{vR}, v{vR} quad_perm:[2,3,0,1] row_mask:0xf bank_mask:0xf")
    a("    s_nop 1")
    a(f"    v_add_f32_dpp v{vR}, v{vR}, v{vR} quad_perm:[1,0,3,2] row_mask:0xf bank_mask:0xf")
    a(f"    v_cmp_gt_f32 vcc, v{vR}, v{vM}")
    a("    s_cbranch_vccnz L_rare")
    a("L_back:")
    a(f"    v_fma_f32 v{vX}, v{vR}, s{sC}, -v{vMs}")
    a(f"    v_exp_f32 v{vX}, v{vX}")
    a("    s_nop 0")
    a(f"    v_cvt_pk_bf16_f32 v{vPP}, v{vX}, v{vX}")
    a(f"    v_add_f32 v{vL}, v{vL}, v{vX}")
    a("    s_nop 0")
    for g in range(4):
        for r in range(4):
            a(f"    v_and_b32_dpp v{vA+g*4+r}, v{vPP}, v{vMask+r} row_newbcast:{LANE_OF_G[g]} row_mask:0xf bank_mask:0xf")
    a("    s_nop 1")
    for g in range(4):
        for h in range(2):
            d = vD + 4 * h
            b = vV + (g * 2 + h) * 4
            a(f"    v_mfma_f32_16x16x32_bf16 v[{d}:{d+3}], v[{vA+g*4}:{vA+g*4+3}], v[{b}:{b+3}], v[{d}:{d+3}]")
    a(f"    s_add_u32 s{sT}, s{sT}, {NC}")
    a(f"    s_cmp_lt_u32 s{sT}, {NT}")
    a("    s_cbranch_scc1 L_cloop")

    if stamps:
        a("    s_memrealtime s[32:33]")
    a("    s_mov_b64 s[4:5], s[52:53]")
    a("    s_mov_b64 s[6:7], s[54:55]")
    a("    s_mov_b64 s[8:9], s[56:57]")
    a(f"    s_sub_u32 s{sWave}, s{sWave}, 1")
    a(f"    v_add_f32_dpp v{vT}, v{vL}, v{vL} row_ror:4 row_mask:0xf bank_mask:0xf")
    a("    s_nop 1")
    a(f"    v_add_f32_dpp v{vT}, v{vT}, v{vT} row_ror:8 row_mask:0xf bank_mask:0xf")
    a(f"    v_and_b32 v{vU}, 15, v{vLane}")
    a(f"    v_lshrrev_b32 v{vX}, 4, v{vLane}")
    a(f"    v_lshlrev_b32 v{vU}, 5, v{vU}")
    a(f"    v_lshl_add_u32 v{vU}, v{vX}, 4, v{vU}")
    a(f"    s_lshl_b32 s26, s{sWave}, 10")
    a(f"    s_add_u32 s26, s26, {ACC0}")
    a(f"    v_add_u32 v{vU}, s26, v{vU}")
    a(f"    s_lshl_b32 s26, s{sWave}, 4")
    a(f"    s_add_u32 s26, s26, {LS0}")
    a(f"    v_lshl_add_u32 v{vX}, v{vX}, 2, s26")
    a(f"    s_lshl_b32 s26, s{sWave}, 2")
    a(f"    s_add_u32 s26, s26, {M0_}")
    a(f"    v_mov_b32 v{vR}, s26")
    a(f"    ds_write_b32 v{vX}, v{vT}")
    a(f"    ds_write_b32 v{vR}, v{vMs}")
    a("    s_nop 4")
    a("    s_mov_b32 exec_hi, 0")
    a(f"    ds_write_b128 v{vU}, v[{vD}:{vD+3}]")
    a(f"    ds_write_b128 v{vU}, v[{vD+4}:{vD+7}] offset:512")
    a("    s_mov_b32 exec_hi, -1")
    a("    s_waitcnt lgkmcnt(0)")
    a("    s_barrier")
    a(f"    s_cmp_lg_u32 s{sWave}, 0")
    a("    s_cbranch_scc1 L_done_stamp")
    e = vK
    a(f"    v_lshlrev_b32 v{vU}, 4, v{vLane}")
    a(f"    v_add_u32 v{vT}, {ACC0}, v{vU}")
    a(f"    v_mov_b32 v{vX}, {LS0}")
    for w in range(NC):
        a(f"    ds_read_b128 v[{e+4*w}:{e+4*w+3}], v{vT} offset:{w*1024}")
    eL = e + 4 * NC
    for w in range(NC):
        a(f"    ds_read_b128 v[{eL+4*w}:{eL+4*w+3}], v{vX} offset:{w*16}")
    eM = eL + 4 * NC
    a(f"    ds_read_b128 v[{eM}:{eM+3}], v{vX} offset:{M0_ - LS0}")
    a("    s_waitcnt lgkmcnt(0)")
    a(f"    v_max_f32 v{vM}, v{eM}, v{eM+1}")
    for w in range(2, NC):
        a(f"    v_max_f32 v{vM}, v{vM}, v{eM+w}")
    for w in range(NC):
        a(f"    v_sub_f32 v{eM+w}, v{eM+w}, v{vM}")
    for w in range(NC):
        a(f"    v_exp_f32 v{eM+w}, v{eM+w}")
    for w in range(NC):
        a(f"    v_add_f32 v{eL+4*w}, v{eL+4*w}, v{eL+4*w+1}")
        a(f"    v_add_f32 v{eL+4*w+2}, v{eL+4*w+2}, v{eL+4*w+3}")
    for w in range(NC):
        a(f"    v_add_f32 v{eL+4*w}, v{eL+4*w}, v{eL+4*w+2}")
    a(f"    v_mul_f32 v{vL}, v{eL}, v{eM}")
    for w in range(1, NC):
        a(f"    v_fma_f32 v{vL}, v{eL+4*w}, v{eM+w}, v{vL}")
    for c in range(4):
        a(f"    v_mul_f32 v{vD+c}, v{e+c}, v{eM}")
    for w in range(1, NC):
        for c in range(4):
            a(f"    v_fma_f32 v{vD+c}, v{e+4*w+c}, v{eM+w}, v{vD+c}")
    a("    s_lshl_b32 s26, s2, 11")
    a("    s_add_u32 s10, s8, s26")
    a("    s_addc_u32 s11, s9, 0")
    a(f"    v_mov_b32 v{vD+4}, v{vM}")
    a(f"    v_mov_b32 v{vD+5}, v{vL}")
    a(f"    global_store_dwordx4 v{vU}, v[{vD}:{vD+3}], s[10:11] sc1")
    a(f"    v_mov_b32 v{vX}, 0")
    a("    s_mov_b64 exec, 1")
    a(f"    global_store_dwordx2 v{vX}, v[{vD+4}:{vD+5}], s[10:11] offset:1024 sc1")
    a("    s_waitcnt vmcnt(0)")
    a(f"    s_lshl_b32 s26, s{sHead}, 2")
    a(f"    v_mov_b32 v{vT}, s26")
    a(f"    v_mov_b32 v{vR}, 1")
    a(f"    global_atomic_add v{vR01}, v{vT}, v{vR}, s[6:7] sc0")
    a("    s_waitcnt vmcnt(0)")
    a(f"    v_readfirstlane_b32 s26, v{vR01}")
    a("    s_mov_b64 exec, -1")
    a(f"    s_cmp_lg_u32 s26, {WPH-1}")
    a("    s_cbranch_scc1 L_done_stamp")
    eL = e + 4 * WPH
    a(f"    s_lshl_b32 s26, s{sHead}, {11 + WPH.bit_length() - 1}")
    a("    s_add_u32 s10, s8, s26")
    a("    s_addc_u32 s11, s9, 0")
    for j in range(WPH):
        a(f"    v_add_u32 v{vT}, {j*2048}, v{vU}")
        a(f"    global_load_dwordx4 v[{e+4*j}:{e+4*j+3}], v{vT}, s[10:11] sc1")
        a(f"    v_mov_b32 v{vT}, {j*2048 + 1024}")
        a(f"    global_load_dwordx2 v[{eL+2*j}:{eL+2*j+1}], v{vT}, s[10:11] sc1")
    a("    s_waitcnt vmcnt(0)")
    a(f"    v_max_f32 v{vM}, v{eL}, v{eL+2}")
    for j in range(2, WPH):
        a(f"    v_max_f32 v{vM}, v{vM}, v{eL+2*j}")
    for j in range(WPH):
        a(f"    v_sub_f32 v{eL+2*j}, v{eL+2*j}, v{vM}")
    for j in range(WPH):
        a(f"    v_exp_f32 v{eL+2*j}, v{eL+2*j}")
    a("    s_nop 0")
    a(f"    v_mul_f32 v{vL}, v{eL}, v{eL+1}")
    for j in range(1, WPH):
        a(f"    v_fma_f32 v{vL}, v{eL+2*j}, v{eL+2*j+1}, v{vL}")
    for c in range(4):
        a(f"    v_mul_f32 v{vD+c}, v{e+c}, v{eL}")
    for j in range(1, WPH):
        for c in range(4):
            a(f"    v_fma_f32 v{vD+c}, v{e+4*j+c}, v{eL+2*j}, v{vD+c}")
    a(f"    v_rcp_f32 v{vL}, v{vL}")
    a("    s_nop 0")
    for c in range(4):
        a(f"    v_mul_f32 v{vD+c}, v{vD+c}, v{vL}")
    a(f"    v_cvt_pk_bf16_f32 v{vD+4}, v{vD}, v{vD+1}")
    a(f"    v_cvt_pk_bf16_f32 v{vD+5}, v{vD+2}, v{vD+3}")
    a(f"    s_lshl_b32 s26, s{sHead}, 9")
    a("    s_add_u32 s4, s4, s26")
    a("    s_addc_u32 s5, s5, 0")
    a(f"    v_lshlrev_b32 v{vT}, 3, v{vLane}")
    a(f"    global_store_dwordx2 v{vT}, v[{vD+4}:{vD+5}], s[4:5]")
    a("L_done_stamp:")
    if stamps:
        a("    s_memrealtime s[34:35]")
        a("    s_waitcnt lgkmcnt(0) vmcnt(0)")
        a(f"    v_readfirstlane_b32 s37, v0")
        a("    s_nop 3")
        a(f"    s_lshr_b32 s37, s37, 6")
        a(f"    s_mul_i32 s36, s2, {NW}")
        a(f"    s_add_u32 s36, s36, s37")
        a("    s_lshl_b32 s36, s36, 4")
        a("    s_add_u32 s36, s36, 0x400000")
        a("    v_mov_b32 v60, s30")
        a("    v_mov_b32 v61, s31")
        a("    v_mov_b32 v62, s34")
        a("    v_mov_b32 v63, s35")
        a("    v_mov_b32 v59, s36")
        a("    global_store_dwordx4 v59, v[60:63], s[8:9]")
        a("    s_getreg_b32 s35, hwreg(HW_REG_XCC_ID)")
        a("    s_lshr_b32 s36, s36, 2")
        a("    s_add_u32 s36, s36, 0x400000")
        a("    v_mov_b32 v60, s35")
        a("    v_mov_b32 v59, s36")
        a("    global_store_dword v59, v60, s[8:9]")
    a("L_done:")
    a("    s_endpgm")

    a("L_rare:")
    a(f"    v_max_f32_dpp v{vT}, v{vR}, v{vR} row_ror:4 row_mask:0xf bank_mask:0xf")
    a("    s_nop 1")
    a(f"    v_max_f32_dpp v{vT}, v{vT}, v{vT} row_ror:8 row_mask:0xf bank_mask:0xf")
    a("    s_nop 1")
    for i in range(4):
        a(f"    v_readlane_b32 s{40+i}, v{vT}, {16*i}")
    a("    s_nop 1")
    a(f"    v_max_f32 v{vT}, s40, v{vM}")
    a(f"    v_max_f32 v{vT}, s41, v{vT}")
    a(f"    v_max_f32 v{vT}, s42, v{vT}")
    a(f"    v_max_f32 v{vT}, s43, v{vT}")
    a(f"    v_sub_f32 v{vU}, v{vM}, v{vT}")
    a(f"    v_mul_f32 v{vU}, s{sC}, v{vU}")
    a(f"    v_exp_f32 v{vU}, v{vU}")
    a(f"    v_mov_b32 v{vM}, v{vT}")
    a(f"    v_mul_f32 v{vMs}, s{sC}, v{vT}")
    a(f"    v_mul_f32 v{vL}, v{vL}, v{vU}")
    for r in range(8):
        a(f"    v_mul_f32 v{vD+r}, v{vD+r}, v{vU}")
    a("    s_branch L_back")

    a('.section .rodata,"a"')
    a(".p2align 6")
    a(f".amdhsa_kernel {KNAME}")
    a(f"  .amdhsa_next_free_vgpr {NV}")
    a("  .amdhsa_next_free_sgpr 64")
    a(f"  .amdhsa_accum_offset {(NV + 3) // 4 * 4}")
    a("  .amdhsa_group_segment_fixed_size 0")
    a("  .amdhsa_kernarg_size 48")
    a("  .amdhsa_user_sgpr_count 2")
    a("  .amdhsa_user_sgpr_kernarg_segment_ptr 1")
    a("  .amdhsa_system_sgpr_workgroup_id_x 1")
    a(".end_amdhsa_kernel")
    return "\n".join(o) + "\n"

if __name__ == "__main__":
    out = sys.argv[1]
    kw = eval("dict(" + (sys.argv[2] if len(sys.argv) > 2 else "") + ")")
    open(out, "w").write(gen(**kw))
```

```python
import sys, struct

KNAME = "standalone__softmax_full_bidir__decode_kernel"
HEADER_COMMENTS = """; Decode attention  out[b,h,:] = softmax(q.K^T / 16) . V   (B*H = 64 heads, 16384 keys, d = 256, bf16)
;
;
;   waves 1..3  consumers: tile t goes to wave 1 + t%3.  QK^T with v_dot2_f32_bf16 + DPP row reduction,
"""

def gen(N=20, A=8, R=8, NC=3, flags="nt", stamps=False, prio=True, N2=None, F=0, safe=False, st2=False, touch=False):
    WPH = 4
    G = 64 * WPH
    REGION = 2 << 20
    NT = REGION // 8192
    NW = NC + 1
    C = 0.0625 * 1.4426950408889634
    Cbits = struct.unpack("<I", struct.pack("<f", C))[0]
    SLOT = 16384
    FL = R * SLOT
    FULL0 = FL; FREE0 = FL + 4 * R
    EP0 = FL + 8 * R
    EP0 = (EP0 + 63) // 64 * 64
    ACC0 = EP0; LS0 = ACC0 + NC * 1024; M0_ = LS0 + NC * 16
    LDS = (M0_ + 16 + 63) // 64 * 64
    assert R & (R - 1) == 0
    assert LDS <= 160 * 1024

    o = []
    a = o.append
    def sleep(n):
        a(f"    s_sleep {n}")
        if safe:
            a("    s_sub_u32 s46, s46, 1")
            a("    s_cbranch_scc1 L_done")
    a(HEADER_COMMENTS.rstrip())
    a(f"; @launch grid=({G},1,1) block=({NW*64},1,1) lds={LDS}")
    a('.amdgcn_target "amdgcn-amd-amdhsa--gfx950"')
    a(".text")
    a(f".globl {KNAME}")
    a(".p2align 8")
    a(f".type {KNAME},@function")
    a(f"{KNAME}:")

    vLane = 1; vOff = 2; vAd = 3
    vQ = 4
    vM = 12; vMs = 13; vL = 14; vR = 15
    vS = 16
    vR01 = 20; vR23 = 21; vX = 22; vPP = 23
    vMask = 24
    vD = 28
    vA = 36
    vT = 52; vU = 53; vF = 54; vFa = 55
    vK = 56; vV = 88
    NV = 124 if touch else 120
    sK = 12; sV = 16
    sOff = 20; sT = 21; sC = 23; sWave = 3; sHead = 24; sSlot = 25; sWant = 22

    a(f"    s_cmp_ge_u32 s2, {G}")
    a("    s_cbranch_scc1 L_done")
    if stamps:
        a("    s_memrealtime s[30:31]")
    if safe:
        a("    s_mov_b32 s46, 2000000")
    a("    s_load_dwordx4 s[4:7], s[0:1], 0")
    a("    s_load_dwordx2 s[8:9], s[0:1], 16")
    a(f"    v_lshrrev_b32 v{vT}, 6, v0")
    a(f"    v_and_b32 v{vLane}, 63, v0")
    a(f"    v_readfirstlane_b32 s{sWave}, v{vT}")
    a(f"    s_lshr_b32 s{sHead}, s2, 2")
    a(f"    s_lshl_b32 s26, s2, 21")
    a(f"    s_cmp_lg_u32 s{sWave}, 0")
    a("    s_cbranch_scc1 L_consumer")

    if prio:
        a("    s_setprio 3")
    a(f"    v_lshlrev_b32 v{vOff}, 4, v{vLane}")
    a(f"    v_mov_b32 v{vT}, 0")
    a(f"    v_lshlrev_b32 v{vFa}, 2, v{vLane}")
    a(f"    v_add_u32 v{vFa}, {FL}, v{vFa}")
    a(f"    v_cmp_gt_u32 vcc, {2*R}, v{vLane}")
    a("    s_and_saveexec_b64 s[40:41], vcc")
    a(f"    ds_write_b32 v{vFa}, v{vT}")
    a("    s_mov_b64 exec, s[40:41]")
    a(f"    s_mov_b32 s{sOff}, 0")
    a(f"    s_mov_b32 s{sSlot}, 0")
    a(f"    s_mov_b32 s{sT}, 0")
    a("    s_waitcnt lgkmcnt(0)")
    a(f"    s_add_u32 s{sK}, s6, s26")
    a(f"    s_addc_u32 s{sK+1}, s7, 0")
    a(f"    s_mov_b32 s{sK+2}, {REGION}")
    a(f"    s_mov_b32 s{sK+3}, 0x20000")
    a(f"    s_add_u32 s{sV}, s8, s26")
    a(f"    s_addc_u32 s{sV+1}, s9, 0")
    a(f"    s_mov_b32 s{sV+2}, {REGION}")
    a(f"    s_mov_b32 s{sV+3}, 0x20000")
    order = []
    for b in range(0, 8, A):
        order += [("K", i) for i in range(b, b + A)]
        order += [("V", i) for i in range(b, b + A)]
    lag = (15 + N) // 16
    W = {"N": N}
    def setN(n):
        assert (15 + n) % 16 != 15
        W["N"] = n
    setN(N)
    vPa = 8; vPv = 9; vFr = 10
    sThr = 47
    def setup(idx):
        kind, i = order[idx]
        q4 = (i // 4) * 4
        return (0 if kind == "K" else 8192) + q4 * 1024, q4
    def tile_loads(waits, publish, gaps=None):
        gaps = gaps or {}
        cur = None
        def emit_setup(idx):
            nonlocal cur
            m0val, q4 = setup(idx)
            if cur != m0val:
                a(f"    s_add_u32 m0, s{sSlot}, {m0val}")
                if q4 != 0:
                    a(f"    s_add_u32 s27, s{sOff}, {q4*1024}")
                cur = m0val
                return True
            return False
        changed = emit_setup(0)
        for idx, (kind, i) in enumerate(order):
            w = waits(idx)
            if w:
                a(f"    s_waitcnt vmcnt({W['N']-1})")
            elif changed:
                a("    s_nop 0")
            srd = sK if kind == "K" else sV
            q4 = (i // 4) * 4
            imm = (i - q4) * 1024
            so = f"s{sOff}" if q4 == 0 else "s27"
            offs = f" offset:{imm}" if imm else ""
            a(f"    buffer_load_dwordx4 v{vOff}, s[{srd}:{srd+3}], {so} offen{offs} {flags} lds")
            if publish and idx == (15 + W["N"]) % 16:
                publish()
            if idx in gaps:
                gaps[idx]()
            changed = False
            if idx + 1 < 16:
                changed = emit_setup(idx + 1)
    def advance():
        a(f"    s_add_u32 s{sOff}, s{sOff}, 8192")
        a(f"    s_add_u32 s{sSlot}, s{sSlot}, {SLOT}")
        a(f"    s_and_b32 s{sSlot}, s{sSlot}, {R*SLOT-1}")
        a(f"    s_add_u32 s{sT}, s{sT}, 1")
    cnt = [0]
    def w_pro(idx):
        cnt[0] += 1
        return cnt[0] > N
    P = lag
    assert (FULL0 % (4 * R)) == 0 and (FREE0 % (4 * R)) == 0
    if st2:
        a("    s_memrealtime s[48:49]")
    for t in range(P):
        tile_loads(w_pro, None)
        advance()
        if t == 0:
            a("    s_barrier")
    if st2:
        a("    s_memrealtime s[50:51]")
        a("    s_waitcnt lgkmcnt(0)")
    assert cnt[0] >= N
    a(f"    v_mov_b32 v{vPa}, {FULL0 + 4 * ((P - lag) & (R - 1))}")
    a(f"    v_mov_b32 v{vPv}, {P - lag + 1}")
    a(f"    v_mov_b32 v{vFr}, {FREE0 + 4 * ((P + 1) & (R - 1))}")
    a(f"    s_mov_b32 s{sThr}, {P - (R - 1)}")
    def wrapinc(reg, base):
        a(f"    v_add_u32 v{reg}, 4, v{reg}")
        a(f"    v_and_b32 v{reg}, {4 * R - 1}, v{reg}")
        a(f"    v_or_b32 v{reg}, {base}, v{reg}")
    def publish():
        a(f"    ds_write_b32 v{vPa}, v{vPv}")
    def pubnext():
        a(f"    v_add_u32 v{vPv}, 1, v{vPv}")
        wrapinc(vPa, FULL0)
    def freeread():
        a(f"    ds_read_b32 v{vF}, v{vFr}")
        a(f"    v_mov_b32 v{vFa}, v{vFr}")
        wrapinc(vFr, FREE0)
    def freecheck(tag):
        a(f"L_lfree{tag}:")
        a("    s_waitcnt lgkmcnt(0)")
        a(f"    v_cmp_le_i32 vcc, s{sThr}, v{vF}")
        a(f"    s_cbranch_vccnz L_lgo{tag}")
        sleep(1)
        a(f"    ds_read_b32 v{vF}, v{vFa}")
        a(f"    s_branch L_lfree{tag}")
        a(f"L_lgo{tag}:")
        a(f"    s_add_u32 s{sThr}, s{sThr}, 1")
    def gaps():
        ipub = (15 + W["N"]) % 16
        g_pub = ipub + 1
        fs = [x for x in range(15) if x not in (ipub, g_pub)]
        return {g_pub: pubnext, fs[6]: freeread}
    a(f"    v_mov_b32 v{vF}, 0x7fffffff")
    a("L_lloop:")
    freecheck("s")
    tile_loads(lambda idx: True, publish, gaps())
    advance()
    a(f"    s_cmp_lt_u32 s{sT}, {NT - F}")
    a("    s_cbranch_scc1 L_lloop")
    lagF = lag
    if F > 0:
        setN(N2 or N)
        lagF = (15 + W["N"]) // 16
        assert lagF >= lag and F > lagF - lag
        for x in range(lagF - lag):
            freecheck(f"x{x}")
            g = gaps()
            g = {k: v for k, v in g.items() if v is freeread}
            tile_loads(lambda idx: True, None, g)
            advance()
        a("L_ploop:")
        freecheck("p")
        tile_loads(lambda idx: True, publish, gaps())
        advance()
        a(f"    s_cmp_lt_u32 s{sT}, {NT}")
        a("    s_cbranch_scc1 L_ploop")
    lag = lagF
    for k in range(lag):
        a(f"    s_waitcnt vmcnt({16 * (lag - 1 - k)})")
        publish()
        pubnext()
    a("    s_waitcnt lgkmcnt(0)")
    if stamps:
        a("    s_load_dwordx2 s[8:9], s[0:1], 40")
        if st2:
            a("    s_waitcnt lgkmcnt(0)")
            a("    s_lshl_b32 s36, s2, 5")
            a("    s_add_u32 s36, s36, 0x600000")
            a("    v_mov_b32 v60, s30")
            a("    v_mov_b32 v61, s31")
            a("    v_mov_b32 v62, s48")
            a("    v_mov_b32 v63, s49")
            a("    v_mov_b32 v59, s36")
            a("    global_store_dwordx4 v59, v[60:63], s[8:9]")
            a("    v_mov_b32 v64, s50")
            a("    v_mov_b32 v65, s51")
            a("    global_store_dwordx2 v59, v[64:65], s[8:9] offset:16")
        a("    s_branch L_done_stamp")
    a("    s_endpgm")

    a("L_consumer:")
    a("    s_load_dwordx4 s[52:55], s[0:1], 24")
    a("    s_load_dwordx2 s[56:57], s[0:1], 40")
    a(f"    v_lshrrev_b32 v{vU}, 4, v{vLane}")
    a(f"    v_and_b32 v{vT}, 15, v{vLane}")
    a(f"    v_lshlrev_b32 v{vOff}, 9, v{vU}")
    a(f"    v_lshl_add_u32 v{vOff}, v{vT}, 4, v{vOff}")
    a(f"    v_lshlrev_b32 v{vX}, 4, v{vT}")
    a(f"    s_lshl_b32 s27, s{sHead}, 9")
    a(f"    s_mov_b32 s{sC}, {Cbits:#x}")
    a("    s_waitcnt lgkmcnt(0)")
    a("    s_add_u32 s4, s4, s27")
    a("    s_addc_u32 s5, s5, 0")
    a(f"    global_load_dwordx4 v[{vQ}:{vQ+3}], v{vX}, s[4:5]")
    a(f"    global_load_dwordx4 v[{vQ+4}:{vQ+7}], v{vX}, s[4:5] offset:256")
    if touch:
        a(f"    v_mov_b32 v123, 0")
        a(f"    global_load_dword v120, v123, s[52:53]")
        a(f"    global_load_dword v121, v123, s[54:55]")
        a(f"    global_load_dword v122, v123, s[56:57]")
    a(f"    v_and_b32 v{vU}, 1, v{vT}")
    a(f"    v_lshrrev_b32 v{vT}, 1, v{vT}")
    a(f"    v_mov_b32 v{vX}, 0xffff")
    a(f"    v_mov_b32 v{vR}, 0xffff0000")
    a(f"    v_cmp_eq_u32 vcc, 1, v{vU}")
    a("    s_nop 1")
    a(f"    v_cndmask_b32 v{vX}, v{vX}, v{vR}, vcc")
    for r in range(4):
        a(f"    v_cmp_eq_u32 vcc, {r}, v{vT}")
        a("    s_nop 1")
        a(f"    v_cndmask_b32 v{vMask+r}, 0, v{vX}, vcc")
    a(f"    v_mov_b32 v{vM}, 0xff800000")
    a(f"    v_mov_b32 v{vMs}, 0xff800000")
    a(f"    v_mov_b32 v{vL}, 0")
    for r in range(8):
        a(f"    v_mov_b32 v{vD+r}, 0")
    a(f"    s_sub_u32 s{sT}, s{sWave}, 1")
    a("    s_barrier")
    a(f"    s_waitcnt vmcnt({3 if touch else 0})")
    LANE_OF_G = [0, 8, 4, 12]
    a("L_cloop:")
    a(f"    s_and_b32 s{sSlot}, s{sT}, {R-1}")
    a(f"    s_lshl_b32 s28, s{sSlot}, 2")
    a(f"    s_add_u32 s28, s28, {FULL0}")
    a(f"    v_mov_b32 v{vFa}, s28")
    a(f"    s_add_u32 s{sWant}, s{sT}, 1")
    a(f"    s_lshl_b32 s29, s{sSlot}, 14")
    a(f"    v_add_u32 v{vAd}, s29, v{vOff}")
    a("L_cpoll:")
    a(f"    ds_read_b32 v{vF}, v{vFa}")
    a("    s_waitcnt lgkmcnt(0)")
    a(f"    v_cmp_eq_u32 vcc, s{sWant}, v{vF}")
    a("    s_cbranch_vccnz L_cgo")
    sleep(1)
    a("    s_branch L_cpoll")
    a("L_cgo:")
    for g in range(4):
        for h in range(2):
            r = vK + (g * 2 + h) * 4
            a(f"    ds_read_b128 v[{r}:{r+3}], v{vAd} offset:{g*2048 + h*256}")
    for g in range(4):
        for h in range(2):
            r = vV + (g * 2 + h) * 4
            a(f"    ds_read_b128 v[{r}:{r+3}], v{vAd} offset:{8192 + g*2048 + h*256}")
    a("    s_waitcnt lgkmcnt(8)")
    for k in range(8):
        h = k >> 2; r = k & 3
        for g in range(4):
            src2 = "0" if k == 0 else f"v{vS+g}"
            a(f"    v_dot2_f32_bf16 v{vS+g}, v{vK+(g*2+h)*4+r}, v{vQ+h*4+r}, {src2}")
    a("    s_waitcnt lgkmcnt(0)")
    a(f"    v_mov_b32 v{vT}, s{sWant}")
    a(f"    ds_write_b32 v{vFa}, v{vT} offset:{FREE0 - FULL0}")
    a("    s_nop 0")
    a(f"    v_add_f32_dpp v{vR01}, v{vS+0}, v{vS+0} row_ror:8 row_mask:0xf bank_mask:0x3")
    a(f"    v_add_f32_dpp v{vR23}, v{vS+2}, v{vS+2} row_ror:8 row_mask:0xf bank_mask:0x3")
    a(f"    v_add_f32_dpp v{vR01}, v{vS+1}, v{vS+1} row_ror:8 row_mask:0xf bank_mask:0xc")
    a(f"    v_add_f32_dpp v{vR23}, v{vS+3}, v{vS+3} row_ror:8 row_mask:0xf bank_mask:0xc")
    a("    s_nop 0")
    a(f"    v_add_f32_dpp v{vR}, v{vR01}, v{vR01} row_shl:4 row_mask:0xf bank_mask:0x5")
    a(f"    v_add_f32_dpp v{vR}, v{vR23}, v{vR23} row_shr:4 row_mask:0xf bank_mask:0xa")
    a("    s_nop 1")
    a(f"    v_add_f32_dpp v{vR}, v{vR}, v{vR} quad_perm:[2,3,0,1] row_mask:0xf bank_mask:0xf")
    a("    s_nop 1")
    a(f"    v_add_f32_dpp v{vR}, v{vR}, v{vR} quad_perm:[1,0,3,2] row_mask:0xf bank_mask:0xf")
    a(f"    v_cmp_gt_f32 vcc, v{vR}, v{vM}")
    a("    s_cbranch_vccnz L_rare")
    a("L_back:")
    a(f"    v_fma_f32 v{vX}, v{vR}, s{sC}, -v{vMs}")
    a(f"    v_exp_f32 v{vX}, v{vX}")
    a("    s_nop 0")
    a(f"    v_cvt_pk_bf16_f32 v{vPP}, v{vX}, v{vX}")
    a(f"    v_add_f32 v{vL}, v{vL}, v{vX}")
    a("    s_nop 0")
    for g in range(4):
        for r in range(4):
            a(f"    v_and_b32_dpp v{vA+g*4+r}, v{vPP}, v{vMask+r} row_newbcast:{LANE_OF_G[g]} row_mask:0xf bank_mask:0xf")
    a("    s_nop 1")
    for g in range(4):
        for h in range(2):
            d = vD + 4 * h
            b = vV + (g * 2 + h) * 4
            a(f"    v_mfma_f32_16x16x32_bf16 v[{d}:{d+3}], v[{vA+g*4}:{vA+g*4+3}], v[{b}:{b+3}], v[{d}:{d+3}]")
    a(f"    s_add_u32 s{sT}, s{sT}, {NC}")
    a(f"    s_cmp_lt_u32 s{sT}, {NT}")
    a("    s_cbranch_scc1 L_cloop")

    if stamps:
        a("    s_memrealtime s[32:33]")
    a("    s_mov_b64 s[4:5], s[52:53]")
    a("    s_mov_b64 s[6:7], s[54:55]")
    a("    s_mov_b64 s[8:9], s[56:57]")
    a(f"    s_sub_u32 s{sWave}, s{sWave}, 1")
    a(f"    v_add_f32_dpp v{vT}, v{vL}, v{vL} row_ror:4 row_mask:0xf bank_mask:0xf")
    a("    s_nop 1")
    a(f"    v_add_f32_dpp v{vT}, v{vT}, v{vT} row_ror:8 row_mask:0xf bank_mask:0xf")
    a(f"    v_and_b32 v{vU}, 15, v{vLane}")
    a(f"    v_lshrrev_b32 v{vX}, 4, v{vLane}")
    a(f"    v_lshlrev_b32 v{vU}, 5, v{vU}")
    a(f"    v_lshl_add_u32 v{vU}, v{vX}, 4, v{vU}")
    a(f"    s_lshl_b32 s26, s{sWave}, 10")
    a(f"    s_add_u32 s26, s26, {ACC0}")
    a(f"    v_add_u32 v{vU}, s26, v{vU}")
    a(f"    s_lshl_b32 s26, s{sWave}, 4")
    a(f"    s_add_u32 s26, s26, {LS0}")
    a(f"    v_lshl_add_u32 v{vX}, v{vX}, 2, s26")
    a(f"    s_lshl_b32 s26, s{sWave}, 2")
    a(f"    s_add_u32 s26, s26, {M0_}")
    a(f"    v_mov_b32 v{vR}, s26")
    a(f"    ds_write_b32 v{vX}, v{vT}")
    a(f"    ds_write_b32 v{vR}, v{vMs}")
    a("    s_nop 4")
    a("    s_mov_b32 exec_hi, 0")
    a(f"    ds_write_b128 v{vU}, v[{vD}:{vD+3}]")
    a(f"    ds_write_b128 v{vU}, v[{vD+4}:{vD+7}] offset:512")
    a("    s_mov_b32 exec_hi, -1")
    a("    s_waitcnt lgkmcnt(0)")
    a("    s_barrier")
    a(f"    s_cmp_lg_u32 s{sWave}, 0")
    a("    s_cbranch_scc1 L_done_stamp")
    e = vK
    a(f"    v_lshlrev_b32 v{vU}, 4, v{vLane}")
    a(f"    v_add_u32 v{vT}, {ACC0}, v{vU}")
    a(f"    v_mov_b32 v{vX}, {LS0}")
    for w in range(NC):
        a(f"    ds_read_b128 v[{e+4*w}:{e+4*w+3}], v{vT} offset:{w*1024}")
    eL = e + 4 * NC
    for w in range(NC):
        a(f"    ds_read_b128 v[{eL+4*w}:{eL+4*w+3}], v{vX} offset:{w*16}")
    eM = eL + 4 * NC
    a(f"    ds_read_b128 v[{eM}:{eM+3}], v{vX} offset:{M0_ - LS0}")
    a("    s_waitcnt lgkmcnt(0)")
    a(f"    v_max_f32 v{vM}, v{eM}, v{eM+1}")
    for w in range(2, NC):
        a(f"    v_max_f32 v{vM}, v{vM}, v{eM+w}")
    for w in range(NC):
        a(f"    v_sub_f32 v{eM+w}, v{eM+w}, v{vM}")
    for w in range(NC):
        a(f"    v_exp_f32 v{eM+w}, v{eM+w}")
    for w in range(NC):
        a(f"    v_add_f32 v{eL+4*w}, v{eL+4*w}, v{eL+4*w+1}")
        a(f"    v_add_f32 v{eL+4*w+2}, v{eL+4*w+2}, v{eL+4*w+3}")
    for w in range(NC):
        a(f"    v_add_f32 v{eL+4*w}, v{eL+4*w}, v{eL+4*w+2}")
    a(f"    v_mul_f32 v{vL}, v{eL}, v{eM}")
    for w in range(1, NC):
        a(f"    v_fma_f32 v{vL}, v{eL+4*w}, v{eM+w}, v{vL}")
    for c in range(4):
        a(f"    v_mul_f32 v{vD+c}, v{e+c}, v{eM}")
    for w in range(1, NC):
        for c in range(4):
            a(f"    v_fma_f32 v{vD+c}, v{e+4*w+c}, v{eM+w}, v{vD+c}")
    a("    s_lshl_b32 s26, s2, 11")
    a("    s_add_u32 s10, s8, s26")
    a("    s_addc_u32 s11, s9, 0")
    a(f"    v_mov_b32 v{vD+4}, v{vM}")
    a(f"    v_mov_b32 v{vD+5}, v{vL}")
    a(f"    global_store_dwordx4 v{vU}, v[{vD}:{vD+3}], s[10:11] sc1")
    a(f"    v_mov_b32 v{vX}, 0")
    a("    s_mov_b64 exec, 1")
    a(f"    global_store_dwordx2 v{vX}, v[{vD+4}:{vD+5}], s[10:11] offset:1024 sc1")
    a("    s_waitcnt vmcnt(0)")
    a(f"    s_lshl_b32 s26, s{sHead}, 2")
    a(f"    v_mov_b32 v{vT}, s26")
    a(f"    v_mov_b32 v{vR}, 1")
    a(f"    global_atomic_add v{vR01}, v{vT}, v{vR}, s[6:7] sc0")
    a("    s_waitcnt vmcnt(0)")
    a(f"    v_readfirstlane_b32 s26, v{vR01}")
    a("    s_mov_b64 exec, -1")
    a(f"    s_cmp_lg_u32 s26, {WPH-1}")
    a("    s_cbranch_scc1 L_done_stamp")
    eL = e + 4 * WPH
    a(f"    s_lshl_b32 s26, s{sHead}, {11 + WPH.bit_length() - 1}")
    a("    s_add_u32 s10, s8, s26")
    a("    s_addc_u32 s11, s9, 0")
    for j in range(WPH):
        a(f"    v_add_u32 v{vT}, {j*2048}, v{vU}")
        a(f"    global_load_dwordx4 v[{e+4*j}:{e+4*j+3}], v{vT}, s[10:11] sc1")
        a(f"    v_mov_b32 v{vT}, {j*2048 + 1024}")
        a(f"    global_load_dwordx2 v[{eL+2*j}:{eL+2*j+1}], v{vT}, s[10:11] sc1")
    a("    s_waitcnt vmcnt(0)")
    a(f"    v_max_f32 v{vM}, v{eL}, v{eL+2}")
    for j in range(2, WPH):
        a(f"    v_max_f32 v{vM}, v{vM}, v{eL+2*j}")
    for j in range(WPH):
        a(f"    v_sub_f32 v{eL+2*j}, v{eL+2*j}, v{vM}")
    for j in range(WPH):
        a(f"    v_exp_f32 v{eL+2*j}, v{eL+2*j}")
    a("    s_nop 0")
    a(f"    v_mul_f32 v{vL}, v{eL}, v{eL+1}")
    for j in range(1, WPH):
        a(f"    v_fma_f32 v{vL}, v{eL+2*j}, v{eL+2*j+1}, v{vL}")
    for c in range(4):
        a(f"    v_mul_f32 v{vD+c}, v{e+c}, v{eL}")
    for j in range(1, WPH):
        for c in range(4):
            a(f"    v_fma_f32 v{vD+c}, v{e+4*j+c}, v{eL+2*j}, v{vD+c}")
    a(f"    v_rcp_f32 v{vL}, v{vL}")
    a("    s_nop 0")
    for c in range(4):
        a(f"    v_mul_f32 v{vD+c}, v{vD+c}, v{vL}")
    a(f"    v_cvt_pk_bf16_f32 v{vD+4}, v{vD}, v{vD+1}")
    a(f"    v_cvt_pk_bf16_f32 v{vD+5}, v{vD+2}, v{vD+3}")
    a(f"    s_lshl_b32 s26, s{sHead}, 9")
    a("    s_add_u32 s4, s4, s26")
    a("    s_addc_u32 s5, s5, 0")
    a(f"    v_lshlrev_b32 v{vT}, 3, v{vLane}")
    a(f"    global_store_dwordx2 v{vT}, v[{vD+4}:{vD+5}], s[4:5]")
    a("L_done_stamp:")
    if stamps:
        a("    s_memrealtime s[34:35]")
        a("    s_waitcnt lgkmcnt(0) vmcnt(0)")
        a(f"    v_readfirstlane_b32 s37, v0")
        a("    s_nop 3")
        a(f"    s_lshr_b32 s37, s37, 6")
        a(f"    s_mul_i32 s36, s2, {NW}")
        a(f"    s_add_u32 s36, s36, s37")
        a("    s_lshl_b32 s36, s36, 4")
        a("    s_add_u32 s36, s36, 0x400000")
        a("    v_mov_b32 v60, s30")
        a("    v_mov_b32 v61, s31")
        a("    v_mov_b32 v62, s34")
        a("    v_mov_b32 v63, s35")
        a("    v_mov_b32 v59, s36")
        a("    global_store_dwordx4 v59, v[60:63], s[8:9]")
        a("    s_getreg_b32 s35, hwreg(HW_REG_XCC_ID)")
        a("    s_lshr_b32 s36, s36, 2")
        a("    s_add_u32 s36, s36, 0x400000")
        a("    v_mov_b32 v60, s35")
        a("    v_mov_b32 v59, s36")
        a("    global_store_dword v59, v60, s[8:9]")
    a("L_done:")
    a("    s_endpgm")

    a("L_rare:")
    a(f"    v_max_f32_dpp v{vT}, v{vR}, v{vR} row_ror:4 row_mask:0xf bank_mask:0xf")
    a("    s_nop 1")
    a(f"    v_max_f32_dpp v{vT}, v{vT}, v{vT} row_ror:8 row_mask:0xf bank_mask:0xf")
    a("    s_nop 1")
    for i in range(4):
        a(f"    v_readlane_b32 s{40+i}, v{vT}, {16*i}")
    a("    s_nop 1")
    a(f"    v_max_f32 v{vT}, s40, v{vM}")
    a(f"    v_max_f32 v{vT}, s41, v{vT}")
    a(f"    v_max_f32 v{vT}, s42, v{vT}")
    a(f"    v_max_f32 v{vT}, s43, v{vT}")
    a(f"    v_sub_f32 v{vU}, v{vM}, v{vT}")
    a(f"    v_mul_f32 v{vU}, s{sC}, v{vU}")
    a(f"    v_exp_f32 v{vU}, v{vU}")
    a(f"    v_mov_b32 v{vM}, v{vT}")
    a(f"    v_mul_f32 v{vMs}, s{sC}, v{vT}")
    a(f"    v_mul_f32 v{vL}, v{vL}, v{vU}")
    for r in range(8):
        a(f"    v_mul_f32 v{vD+r}, v{vD+r}, v{vU}")
    a("    s_branch L_back")

    a('.section .rodata,"a"')
    a(".p2align 6")
    a(f".amdhsa_kernel {KNAME}")
    a(f"  .amdhsa_next_free_vgpr {NV}")
    a("  .amdhsa_next_free_sgpr 64")
    a(f"  .amdhsa_accum_offset {(NV + 3) // 4 * 4}")
    a("  .amdhsa_group_segment_fixed_size 0")
    a("  .amdhsa_kernarg_size 48")
    a("  .amdhsa_user_sgpr_count 2")
    a("  .amdhsa_user_sgpr_kernarg_segment_ptr 1")
    a("  .amdhsa_system_sgpr_workgroup_id_x 1")
    a(".end_amdhsa_kernel")
    return "\n".join(o) + "\n"

if __name__ == "__main__":
    out = sys.argv[1]
    kw = eval("dict(" + (sys.argv[2] if len(sys.argv) > 2 else "") + ")")
    open(out, "w").write(gen(**kw))
```
